```python
import torch

def _softmax(x, axis=-1):
    return torch.softmax(x, dim=axis)

def _gelu(x):
    return torch.nn.functional.gelu(x, approximate='tanh')

def _silu(x):
    return torch.nn.functional.silu(x)

def _sigmoid(x):
    return torch.sigmoid(x)

def _layernorm(x, axis=-1, eps=1e-05):
    m = x.mean(dim=axis, keepdim=True)
    v = x.var(dim=axis, keepdim=True, unbiased=False)
    return (x - m) / torch.sqrt(v + eps)

def _scatter_add(tgt, idx, src, axis=0):
    return tgt.clone().index_add_(axis, idx, src)

def _segment_sum(src, seg, n):
    out = torch.zeros((n,) + src.shape[1:], dtype=src.dtype)
    return out.index_add_(0, seg, src)

def _pad(x, pw):
    flat = tuple((v for pair in reversed(pw) for v in pair))
    return torch.nn.functional.pad(x, flat)
kernel_name = 'interleave_layers__memory_aug_recurrent_mem_tr__glu_gated_glu__prompt'

def setup_inputs():

    _w = lambda a: (lambda t: t.to(torch.bfloat16) if t.is_floating_point() else t)(torch.as_tensor(a))

    def _A_setup():
        B, S, Dm = (1, 2048, 512)
        H, Dh = (32, 128)
        M, seg = (8, 32)
        seg = min(seg, S)
        S = S // seg * seg
        return {'x': _w((lambda *s: torch.randn(*s, dtype=torch.bfloat16) * 0.05)(B, S, Dm)), 'mem0': _w((lambda *s: torch.randn(*s, dtype=torch.bfloat16) * 0.8)(B, M, Dm)), 'Wq': _w((lambda *s: torch.randn(*s, dtype=torch.bfloat16) * 0.8)(Dm, H, Dh) * Dm ** (-0.5)), 'Wk': _w((lambda *s: torch.randn(*s, dtype=torch.bfloat16) * 0.8)(Dm, H, Dh) * Dm ** (-0.5)), 'Wv': _w((lambda *s: torch.randn(*s, dtype=torch.bfloat16) * 0.8)(Dm, H, Dh) * Dm ** (-0.5)), 'Wo': _w((lambda *s: torch.randn(*s, dtype=torch.bfloat16) * 0.8)(H, Dh, Dm) * (H * Dh) ** (-0.5)), 'seg_len': seg}
    _A_in = _A_setup()

    def _B_setup():
        B, S, D, F = (1, 2048, 512, 1792)
        return {'x': _w((lambda *s: torch.randn(*s, dtype=torch.bfloat16) * 0.05)(B, S, D)), 'w_gate': _w((lambda *s: torch.randn(*s, dtype=torch.bfloat16) * 0.05)(D, F)), 'w_up': _w((lambda *s: torch.randn(*s, dtype=torch.bfloat16) * 0.05)(D, F)), 'w_down': _w((lambda *s: torch.randn(*s, dtype=torch.bfloat16) * 0.05)(F, D))}
    _B_in = _B_setup()
    return {'A_x': _A_in['x'], 'A_mem0': _A_in['mem0'], 'A_Wq': _A_in['Wq'], 'A_Wk': _A_in['Wk'], 'A_Wv': _A_in['Wv'], 'A_Wo': _A_in['Wo'], 'A_seg_len': _A_in['seg_len'], 'B_x': _B_in['x'], 'B_w_gate': _B_in['w_gate'], 'B_w_up': _B_in['w_up'], 'B_w_down': _B_in['w_down']}

def reference(A_x, A_mem0, A_Wq, A_Wk, A_Wv, A_Wo, A_seg_len, B_x, B_w_gate, B_w_up, B_w_down):

    def _A_ref(x, mem0, Wq, Wk, Wv, Wo, seg_len):
        B, S, Dm = x.shape
        H, Dh = (Wq.shape[1], Wq.shape[2])
        M = mem0.shape[1]
        scale = Dh ** (-0.5)
        n_seg = S // seg_len
        L = M + seg_len
        idx = torch.arange(L)
        mask = (idx[:, None] < M) | (idx[:, None] >= idx[None, :])
        mem = mem0
        outs = []
        for s in range(n_seg):
            xs = x[:, s * seg_len:(s + 1) * seg_len, :].clone()
            h = torch.concatenate([mem, xs], axis=1)
            q = torch.einsum('btd,dhe->bhte', h, Wq)
            k = torch.einsum('btd,dhe->bhte', h, Wk)
            v = torch.einsum('btd,dhe->bhte', h, Wv)
            scores = torch.einsum('bhqe,bhke->bhqk', q, k) * scale
            scores = torch.where(mask[None, None], scores, -1000000000.0)
            p = _softmax(scores, axis=-1)
            o = torch.einsum('bhqk,bhke->bhqe', p, v)
            o = torch.einsum('bhte,hed->btd', o, Wo)
            mem = o[:, :M, :].clone()
            outs.append(o[:, M:, :])
        return torch.concatenate(outs, axis=1)

    def _B_ref(x, w_gate, w_up, w_down):
        g = torch.einsum('bsd,df->bsf', x, w_gate)
        u = torch.einsum('bsd,df->bsf', x, w_up)
        h = _sigmoid(g) * u
        return torch.einsum('bsf,fd->bsd', h, w_down)
    x = A_x
    x = x + _A_ref(_layernorm(x, axis=-1), A_mem0, A_Wq, A_Wk, A_Wv, A_Wo, A_seg_len)
    x = x + _B_ref(_layernorm(x, axis=-1), B_w_gate, B_w_up, B_w_down)
    x = x + _A_ref(_layernorm(x, axis=-1), A_mem0, A_Wq, A_Wk, A_Wv, A_Wo, A_seg_len)
    x = x + _B_ref(_layernorm(x, axis=-1), B_w_gate, B_w_up, B_w_down)
    return x
```

```python
import re
class Asm:
    def __init__(self):
        self.lines=[]; self.uid=0
    def __call__(self, s):
        for l in s.strip().split("\n"):
            l=l.strip()
            if l: self.lines.append(l)
    def label(self, n): self.lines.append(n+":")
    def new(self, p="L"):
        self.uid+=1; return f"{p}_{self.uid}"
    def text(self): return "\n".join(("  "+l if not l.endswith(":") else l) for l in self.lines)+"\n"

def v(a,n=1): return f"v{a}" if n==1 else f"v[{a}:{a+n-1}]"
def a_(a,n=1): return f"a{a}" if n==1 else f"a[{a}:{a+n-1}]"
def s(a,n=1): return f"s{a}" if n==1 else f"s[{a}:{a+n-1}]"
def reg(idx,n=1):
    return v(idx,n) if idx<256 else a_(idx-256,n)

def weave(backbone, fillers):
    out=list(fillers.get(-1,[]))
    for i,b in enumerate(backbone):
        out.append(b); out+=fillers.get(i,[])
    assert all(k<len(backbone) for k in fillers), "filler past end"
    return out

_R=re.compile(r"^(-|abs\()?([vas])(\d+)\)?$|^(-|abs\()?([vas])\[(\d+):(\d+)\]\)?$")
def regs_of(op):
    op=op.strip()
    if op in("vcc","exec","m0","vcc_lo","vcc_hi","exec_lo","exec_hi"):
        b=op.split("_")[0]; return {b}
    m=_R.match(op)
    if not m: return set()
    if m.group(2): return {m.group(2)+m.group(3)}
    return {m.group(5)+str(i) for i in range(int(m.group(6)),int(m.group(7))+1)}
TRANS=("v_exp_","v_log_","v_rcp_","v_rsq_","v_sqrt_","v_sin_","v_cos_")
def parse(line):
    line=line.split(";")[0].strip()
    line=re.sub(r"\s(op_sel|op_sel_hi|neg_lo|neg_hi|quad_perm):\[[^\]]*\]"," ",line).strip()
    p=line.split(None,1); mn=p[0]; rest=p[1] if len(p)>1 else ""
    parts=[x.strip() for x in rest.split(",")] if rest else []
    mods=""
    if parts:
        t=parts[-1].split(None,1); parts[-1]=t[0]; mods=t[1] if len(t)>1 else ""
    ops=[regs_of(x) for x in parts]
    d=dict(mn=mn,mods=mods,w=set(),r=set(),kind="other",line=line,parts=parts)
    U=lambda L:set().union(*L) if L else set()
    if mn.startswith("v_mfma") or mn.startswith("v_smfmac"):
        d["kind"]="mfma"; d["w"]=ops[0]; d["A"]=ops[1]; d["B"]=ops[2]
        if mn.startswith("v_smfmac"): d["C"]=ops[0]; d["AB"]=ops[1]|ops[2]|ops[3]
        else: d["C"]=ops[3]; d["AB"]=ops[1]|ops[2]
        d["r"]=d["AB"]|d["C"]; d["pass"]=8 if "32x32" in mn else 4
    elif mn.startswith("v_"):
        d["kind"]="valu"
        if mn.startswith("v_cmp"): d["w"]=ops[0]; d["r"]=U(ops[1:])
        elif "swap" in mn: d["w"]=U(ops); d["r"]=U(ops)
        elif mn.startswith(("v_add_co","v_sub_co")): d["w"]=ops[0]|ops[1]; d["r"]=U(ops[2:])
        elif mn.startswith(("v_addc_co","v_subb_co")): d["w"]=ops[0]|ops[1]; d["r"]=U(ops[2:])
        else:
            d["w"]=ops[0]; d["r"]=U(ops[1:])
            if mn.startswith(("v_fmac","v_mac","v_pk_fmac","v_dot2c")) or "_dpp" in mn or mn.startswith("v_writelane"): d["r"]|=ops[0]
        d["trans"]=mn.startswith(TRANS); d["dpp"]="_dpp" in mn; d["perm"]="permlane" in mn
        d["rl"]=mn.startswith(("v_readfirstlane","v_readlane"))
    elif mn.startswith("ds_"):
        d["kind"]="ds"
        if mn.startswith(("ds_read","ds_bpermute","ds_swizzle","ds_permute")): d["w"]=ops[0]; d["r"]=U(ops[1:]); d["load"]=True
        else: d["r"]=U(ops); d["load"]=False
    elif mn.startswith(("buffer_","global_")):
        d["kind"]="vmem"; lds=" lds" in (" "+mods) or "load_lds" in mn
        d["lds"]=lds
        if mn in("buffer_inv","buffer_wbl2"): d["load"]=False
        elif "load" in mn and not lds: d["w"]=ops[0]; d["r"]=U(ops[1:]); d["load"]=True
        elif "atomic" in mn and "sc0" in mods:
            d["w"]=ops[0]; d["r"]=U(ops) if mn.startswith("buffer") else U(ops[1:]); d["load"]=True
        else:
            d["r"]=U(ops); d["load"]=False
            if lds: d["r"]|={"m0"}
            if ("x4" in mn or "x3" in mn) and "store" in mn: d["wide"]=ops[0] if mn.startswith("buffer") else ops[1]
    elif mn.startswith("s_"):
        d["kind"]="salu"
        if mn.startswith(("s_load","s_memtime","s_memrealtime","s_buffer_load")): d["kind"]="smem"; d["w"]=ops[0]; d["r"]=U(ops[1:])
        elif mn.startswith(("s_cmp","s_cbranch","s_branch","s_waitcnt","s_nop","s_barrier","s_sleep","s_endpgm","s_setprio","s_bitcmp")): d["r"]=U(ops)
        else:
            d["w"]=ops[0] if ops else set(); d["r"]=U(ops[1:])
            if "saveexec" in mn: d["w"]|={"exec"}
    return d
def check(lines, name=""):
    errs=[]; hist=[]
    pos=0; vm=[]; lg=[]
    for ln in lines:
        if ln.endswith(":") or ln.startswith((";",".")): continue
        d=parse(ln); mn=d["mn"]
        def need(n,p,why):
            dist=pos-p[0]-1
            if dist<n: errs.append(f"[{name}] {why}: need {n} have {dist}: '{p[1]['line']}' -> '{ln}'")
        if mn=="s_waitcnt":
            m=re.search(r"vmcnt\((\d+)\)",ln)
            if m: n=int(m.group(1)); vm=vm[len(vm)-n:] if n<len(vm) else vm; vm=vm if n else []
            m=re.search(r"lgkmcnt\((\d+)\)",ln)
            if m:
                n=int(m.group(1))
                if n and any(x[1]=="smem" for x in lg): errs.append(f"[{name}] counted lgkmcnt with smem outstanding: {ln}")
                lg=lg[len(lg)-n:] if n<len(lg) else lg; lg=lg if n else []
        touched=d["r"]|d["w"]
        for q,qn in((vm,"vm"),(lg,"lgkm")):
            for o in q:
                if o[0]&d["r"]: errs.append(f"[{name}] read of outstanding {qn} dest {sorted(o[0]&d['r'])[:3]}: '{o[2]}' -> '{ln}'")
                elif o[0]&d["w"] and not (d["kind"] in("vmem",) and qn=="vm") and not(d["kind"]=="ds" and qn=="lgkm"):
                    errs.append(f"[{name}] overwrite of outstanding {qn} dest: '{o[2]}' -> '{ln}'")
        for p in reversed(hist):
            if pos-p[0]>24: break
            e=p[1]
            if e["kind"]=="valu":
                vw={x for x in e["w"] if x[0] in "va" and x!="vcc"}
                sw={x for x in e["w"] if x[0]=="s" or x=="vcc"}
                if d["kind"]=="mfma" and vw&d["r"]: need(2,p,"VALU->MFMA")
                if d["kind"]=="valu":
                    if e["trans"] and not d["trans"] and vw&d["r"]: need(1,p,"trans->valu")
                    if (d["dpp"] or d["perm"]) and vw&d["r"]: need(2,p,"valu->dpp/perm")
                    if d["rl"] and vw&d["r"]: need(1,p,"valu->readlane")
                    if sw&d["r"]: need(2,p,"valu sgpr->valu")
                    if "exec" in e["w"]: need(4,p,"valu exec")
                if d["kind"]=="vmem" and sw&d["r"]: need(5,p,"valu sgpr->vmem")
            if e["kind"]=="mfma":
                P=e["pass"]; big={4:8,8:12}[P]
                if d["kind"]=="mfma":
                    if e["w"]&d["AB"]: need(big,p,"mfma D->AB")
                    if e["w"]&d["C"] and not(e["w"]==d["C"] and e["mn"]==d["mn"]): need({4:8,8:12}[P],p,"mfma D->C overlap")
                    elif e["w"]&d["w"] and not (e["w"]==d["C"]): need(big,p,"mfma WAW (conservative)")
                elif d["kind"] in("valu","vmem","ds"):
                    if e["w"]&touched: need(big,p,"mfma D->valu/mem")
                    if d["kind"]=="valu" and e["C"]&d["w"]: need({4:3,8:7}[P],p,"mfma C WAR")
            if e["kind"]=="vmem" and e.get("wide") and d["kind"] in("valu","mfma") and e["wide"]&d["w"]: need(2,p,"wide store WAR")
            if e["kind"]=="ds" and not e["load"] and d["kind"]=="valu" and False: pass
            if e["kind"]=="salu" and "m0" in e["w"] and d["kind"]=="vmem" and d.get("lds"): need(1,p,"m0->lds dma")
        if d["kind"]=="vmem": vm.append((d["w"],"vmem",ln))
        if d["kind"]=="ds": lg.append((d["w"],"ds",ln))
        if d["kind"]=="smem": lg.append((d["w"],"smem",ln))
        if len(vm)>63: errs.append(f"[{name}] >63 vm outstanding at {ln}"); vm=vm[-63:]
        hist.append((pos,d))
        if mn=="s_nop": pos+=int(d["parts"][0],0)+1
        else: pos+=1
    return errs
def path(lines, spans):
    idx={l[:-1]:i for i,l in enumerate(lines) if l.endswith(":")}
    out=[]
    for a,b in spans: out+=lines[idx[a]:idx[b]]
    return out

def finalize(lines, vm0=None, lg0=None):
    out=[]; vm=list(vm0 or []); lg=list(lg0 or [])
    def tag(l):
        m=re.search(r";@(\w+)",l); return m.group(1) if m else None
    def emit_wait(nv,nl):
        nonlocal vm,lg
        p=[]
        if nv is not None and nv<len(vm): p.append(f"vmcnt({min(nv,63)})"); vm=vm[len(vm)-nv:] if nv else []
        if nl is not None and nl<len(lg):
            if any(x[1]=="smem" for x in lg): nl=0
            nl=min(nl,15); p.append(f"lgkmcnt({nl})"); lg=lg[len(lg)-nl:] if nl else []
        if p: out.append("s_waitcnt "+" ".join(p))
    def after(q,pred):
        idx=[i for i,o in enumerate(q) if pred(o)]
        return None if not idx else len(q)-1-idx[-1]
    for ln in lines:
        if ln.endswith(":") or ln.startswith((";",".")): out.append(ln); continue
        if ln.startswith("!"): out.append(ln[1:]); continue
        if ln.startswith("@assume0"): vm=[]; lg=[]; continue
        if ln.startswith("@wait"):
            nv=nl=None
            for part in ln.split()[1:]:
                k,t=part.split("="); t=set(t.split(","))
                if k=="vm": nv=0 if "all" in t else after(vm,lambda o:o[2] in t)
                else: nl=0 if "all" in t else after(lg,lambda o:o[2] in t)
            emit_wait(nv,nl); continue
        d=parse(ln)
        if d["mn"]=="s_waitcnt":
            m=re.search(r"vmcnt\((\d+)\)",ln)
            if m: n=int(m.group(1)); vm=(vm[len(vm)-n:] if n<len(vm) else vm) if n else []
            m=re.search(r"lgkmcnt\((\d+)\)",ln)
            if m: n=int(m.group(1)); lg=(lg[len(lg)-n:] if n<len(lg) else lg) if n else []
            out.append(ln); continue
        tv=d["r"]|(d["w"] if d["kind"]!="vmem" else set()); tl=d["r"]|(d["w"] if d["kind"]!="ds" else set())
        emit_wait(after(vm,lambda o:o[0]&tv), after(lg,lambda o:o[0]&tl))
        out.append(ln)
        if d["kind"]=="vmem": vm.append((d["w"],"vmem",tag(ln)))
        if d["kind"]=="ds": lg.append((d["w"],"ds",tag(ln)))
        if d["kind"]=="smem": lg.append((d["w"],"smem",tag(ln)))
    res=[]
    for ln in out:
        if ln.endswith(":") or ln.startswith((";",".")): res.append(ln); continue
        win=[x for x in res[-40:]]
        base=len(check_h(win))
        errs=check_h(win+[ln])[base:]
        if errs:
            k=max(int(re.search(r"need (\d+) have (\d+)",e).group(1))-int(re.search(r"need (\d+) have (\d+)",e).group(2)) for e in errs)
            res.append(f"s_nop {k-1}")
        res.append(ln)
    return res
def check_h(lines):
    return [e for e in check(lines) if "need " in e]

import subprocess
_SZ={}
def sizes(lines):
    need=[l for l in dict.fromkeys(lines) if l not in _SZ and not l.endswith(":") and not l.startswith((";","."))]
    q=[l for l in need if not l.startswith(("s_cbranch","s_branch"))]
    for l in need:
        if l not in q: _SZ[l]=4
    if q:
        r=subprocess.run(["llvm-mc","-triple=amdgcn-amd-amdhsa","-mcpu=gfx950","-show-encoding"],input="\n".join(q)+"\n",capture_output=True,text=True)
        enc=[x for x in r.stdout.split("\n") if "encoding:" in x]
        assert len(enc)==len(q),(r.stderr[:2000])
        for l,e in zip(q,enc): _SZ[l]=e.split("encoding:")[1].count("0x")
    return [0 if (l.endswith(":") or l.startswith((";","."))) else _SZ[l] for l in lines]
def conv64(l):
    mn=l.split()[0]
    if not mn.startswith("v_") or mn.endswith(("_e64","_dpp")) or "swap" in mn or mn.startswith(("v_readfirstlane","v_accvgpr")): return None
    return l.replace(mn,mn+"_e64",1)
def align8(lines, nop_min=6):
    sz=sizes(lines); out=list(lines); par=0; i=0; n=len(lines); res=[]
    while i<n:
        if sz[i]!=4: res.append(out[i]); i+=1; continue
        j=i; run=[]
        while j<n and sz[j] in(0,4): run.append(j); j+=1
        cnt=sum(1 for k in run if sz[k]==4)
        par=(par+cnt)%2
        seg=[out[k] for k in run]
        if par:
            c=[x for x,k in enumerate(run) if sz[k]==4 and conv64(out[k])]
            if c: seg[c[0]]=conv64(seg[c[0]]); par=0
            else:
                m=j; long=0
                while m<n and sz[m]!=4:
                    if sz[m] and "mfma" not in out[m]: long+=1
                    m+=1
                if long>=nop_min: seg.append("s_nop 0"); par=0
        res+=seg; i=j
    return res
```

```python
from asmlib import *
from layout import *
NAME="interleave_layers__memory_aug_recurrent_mem_tr__glu_gated_glu__prompt_kernel"
KA=dict(x=0,mem0=8,Wq=16,Wk=24,Wv=32,Wo=40,Wg=64,Wu=72,Wd=80,out=88,dbg=96,ws=104)
TMO=1<<21
S_WS=4
S_T=8
S_L=12; S_R=13; S_W=14
S_DBG=62
S_XCC=64; S_RANK=65; S_TMO=66; S_TMP=67
def srd(A, key, nbytes, base=S_T):
    A(f"s_load_dwordx2 {s(base,2)}, s[0:1], {KA[key]}")
    A(f"s_mov_b32 {s(base+2)}, {nbytes}"); A(f"s_mov_b32 {s(base+3)}, 0x20000")
    A("s_waitcnt lgkmcnt(0)")
def tmo(A):
    A(f"s_sub_u32 {s(S_TMO)}, {s(S_TMO)}, 1"); A("s_cbranch_scc1 L_abort")
def arrive(A):
    l=A.new("L_arr")
    A("s_waitcnt vmcnt(0)"); A("s_barrier")
    A(f"s_cmp_lg_u32 {s(S_W)}, 0"); A(f"s_cbranch_scc1 {l}")
    A("s_mov_b64 exec, 1"); A("v_mov_b32 v100, 32"); A("v_mov_b32 v101, 1")
    A(f"global_atomic_add v100, v101, {s(S_DBG,2)} sc1")
    A("s_mov_b64 exec, -1"); A.label(l)
def wait_go(A):
    l=A.new("L_go")
    A("v_mov_b32 v100, 32")
    A.label(l); tmo(A)
    A(f"global_load_dword v101, v100, {s(S_DBG,2)} sc1"); A("s_waitcnt vmcnt(0)")
    A(f"v_readfirstlane_b32 {s(S_TMP)}, v101"); A("s_nop 3")
    A(f"s_cmp_lt_u32 {s(S_TMP)}, 256"); A(f"s_cbranch_scc1 {l}")
def stamp(A, opt, slot):
    if not opt.get("stamp"): return
    l=A.new("L_st")
    A(f"s_cmp_lg_u32 {s(S_W)}, 0"); A(f"s_cbranch_scc1 {l}")
    A("s_memrealtime s[68:69]"); A("s_memtime s[70:71]"); A("s_waitcnt lgkmcnt(0)")
    A(f"s_lshl_b32 s69, {s(S_XCC)}, 5"); A(f"s_add_u32 s69, s69, {s(S_RANK)}"); A("s_lshl_b32 s69, s69, 6")
    A(f"s_add_u32 s69, s69, {STAMP+slot*8}")
    A("s_mov_b64 exec, 1"); A("v_accvgpr_read_b32 v15, a0") if False else None
    A("v_mov_b32 v46, s68"); A("v_mov_b32 v47, s70")
    A(f"buffer_store_dwordx2 v[46:47], off, {s(S_WS,4)}, s69"); A("s_waitcnt vmcnt(0)")
    A("s_mov_b64 exec, -1"); A.label(l)
def startup(A, opt):
    A("s_cmp_ge_u32 s2, 256"); A("s_cbranch_scc1 L_end")
    A(f"s_load_dwordx2 {s(S_WS,2)}, s[0:1], {KA['ws']}"); A(f"s_load_dwordx2 {s(S_DBG,2)}, s[0:1], {KA['dbg']}")
    A(f"s_getreg_b32 {s(S_XCC)}, hwreg(HW_REG_XCC_ID, 0, 3)")
    A(f"s_mov_b32 {s(S_WS+2)}, {WS}"); A(f"s_mov_b32 {s(S_WS+3)}, 0x20000")
    A(f"s_mov_b32 {s(S_TMO)}, {opt.get('tmo',TMO)}")
    A("v_lshrrev_b32 v1, 6, v0"); A("v_lshlrev_b32 v2, 4, v0"); A(f"v_readfirstlane_b32 {s(S_W)}, v1")
    A("v_mov_b64 v[8:9], 0"); A("v_mov_b64 v[10:11], 0"); A("v_mov_b32 v3, 0"); A("s_lshl_b32 s3, s2, 12")
    A("s_waitcnt lgkmcnt(0)")
    A(f"s_cmp_lg_u32 {s(S_W)}, 0"); A("s_cbranch_scc1 L_norank")
    A("s_mov_b64 exec, 1")
    A(f"s_lshl_b32 {s(S_TMP)}, {s(S_XCC)}, 2"); A(f"v_mov_b32 v4, {s(S_TMP)}"); A("v_mov_b32 v5, 1")
    A(f"global_atomic_add v5, v4, v5, {s(S_DBG,2)} sc0 sc1"); A("s_waitcnt vmcnt(0)")
    A("ds_write_b32 v3, v5"); A("s_mov_b64 exec, -1")
    A.label("L_norank")
    if opt.get("clear",True): A(f"buffer_store_dwordx4 v[8:11], v2, {s(S_WS,4)}, s3 offen sc1")
    A("s_waitcnt lgkmcnt(0)"); A("s_barrier")
    A("ds_read_b32 v5, v3"); A("v_and_b32 v0, 63, v0"); A("s_waitcnt lgkmcnt(0)")
    A(f"v_readfirstlane_b32 {s(S_RANK)}, v5"); A("s_nop 3"); A("s_barrier")
    A(f"s_cmp_ge_u32 {s(S_RANK)}, 32"); A("s_cbranch_scc1 L_abort")
```

```python
from gen_common import *
WSS=s(S_WS,4)
vFL,vF,vST0,vST1,vST2,vDM,vT=1,2,3,4,5,6,7
vRD=8
vDA=16
AF=24
ACC=48
PK=96
sID=15; sI=16; sA1=17; sA2=18; sA3=19; sB1=20; sB2=21; sSTEP=22; sISS=23; sPEND=24; sSRC=25; sFIN=26; sOUT=27; sFOUT=28
sM0=29; sNSRC=30; sNFIN=31; sNOUT=32; sNFOUT=33; sDS=34; sC0=35; sC1=36; sC2=37; sC3=38; sC4=39; sK0=40; sK1=41
def wreg(tile,ks,NK):
    i=(tile*NK+ks)*4
    return 256+i if i<256 else 128+(i-256)
def mf(d,a,b,first): return f"v_mfma_f32_32x32x16_bf16 {v(d,16)}, {reg(a,4)}, {reg(b,4)}, {0 if first else v(d,16)}"
def cvt(d,a,b): return f"v_cvt_pk_bf16_f32 {v(d)}, {v(a)}, {v(b)}"

def load_weights(A, panels, NK):
    n=len(panels); L=[]; E=L.append
    def issue(p):
        sr,sb,c,rs,vs,_,_,_,nk=panels[p]
        for i in range(nk):
            E(f"s_add_u32 s67, {s(sM0)}, {(p%9)*16384+i*4096}"); E("s_mov_b32 m0, s67")
            E(f"s_add_u32 s68, {s(sb)}, {c+16*i*rs}")
            E(f"buffer_load_dwordx4 {v(vs)}, {s(sr,4)}, s68 offen lds ;@p{p}")
    for p in range(min(8,n)): issue(p)
    for p in range(n):
        E(f"@wait vm=p{p} lg=all"); E("s_barrier")
        if p+8<n: issue(p+8)
        _,_,_,_,_,vt,tile,ks0,nk=panels[p]
        for kk in range(nk):
            for q in range(2):
                off=(p%9)*16384+(16*kk+4*q)*256
                E(f"ds_read_b64_tr_b16 {reg(wreg(tile,ks0+kk,NK)+2*q,2)}, {v(vt+(off>>16))} offset:{off&0xffff}")
    E("@wait lg=all"); E("s_barrier")
    A("\n".join(finalize(L)))

def tr_addr(E, dst, kind):
    E("v_lshrrev_b32 v60, 5, v0"); E("v_bfe_u32 v61, v0, 2, 2"); E("v_lshl_add_u32 v60, v60, 3, v61"); E("v_lshlrev_b32 v60, 8, v60")
    E("v_bfe_u32 v61, v0, 4, 1"); E("v_and_b32 v62, 3, v0"); E("v_lshl_add_u32 v61, v61, 2, v62")
    if kind=="nat": E("v_lshlrev_b32 v62, 3, v61")
    else:
        E("v_and_b32 v63, 1, v61"); E("v_lshrrev_b32 v64, 1, v61")
        if kind=="qk": E("v_lshlrev_b32 v62, 5, v63"); E("v_lshl_add_u32 v62, v64, 3, v62")
        else: E("v_lshrrev_b32 v65, 1, v64"); E("v_and_b32 v64, 1, v64"); E("v_lshlrev_b32 v62, 5, v65"); E("v_lshl_add_u32 v62, v63, 4, v62"); E("v_lshl_add_u32 v62, v64, 3, v62")
    E(f"s_lshl_b32 s67, {s(S_W)}, 6"); E("v_add3_u32 v60, v60, v62, s67")
    E(f"v_mov_b32 {v(dst)}, v60"); E(f"v_add_u32 {v(dst+1)}, 0x10000, v60"); E(f"v_add_u32 {v(dst+2)}, 0x20000, v60")

def nexttask(role):
    L=[f"s_add_u32 {s(sI)}, {s(sI)}, 1", f"s_add_u32 {s(sID)}, {s(sID)}, {s(sSTEP)}",
       f"s_cmp_eq_u32 {s(sI)}, {s(sA1)}", f"s_cselect_b32 {s(sID)}, {s(sB1)}, {s(sID)}", f"s_cselect_b32 {s(sSTEP)}, 1, {s(sSTEP)}",
       f"s_cmp_eq_u32 {s(sI)}, {s(sA2)}", f"s_cselect_b32 {s(sID)}, {s(sB2)}, {s(sID)}", f"s_cselect_b32 {s(sSTEP)}, 2, {s(sSTEP)}"]
    return L+offsets(role)
def offsets(role):
    i=s(sID)
    if role=="s1":
        return [f"s_lshr_b32 s67, {i}, 6", f"s_and_b32 s68, {i}, 63", "s_lshl_b32 s69, s67, 7", "s_add_u32 s69, s69, s68",
                "s_lshl_b32 s70, s69, 15", f"s_add_u32 {s(sNSRC)}, s70, {s(sC0)}", "s_lshl_b32 s70, s69, 10", f"s_add_u32 {s(sNFIN)}, s70, {FN}",
                f"s_mul_i32 s70, {i}, 786432", f"s_add_u32 {s(sNOUT)}, s70, {s(sC1)}",
                "s_lshl_b32 s70, s67, 15", "s_lshl_b32 s68, s68, 4", "s_add_u32 s70, s70, s68", f"s_add_u32 {s(sNFOUT)}, s70, {s(sC2)}"]
    m=dict(s3=(262144,1024,524288,256), s4=(32768,1024,114688,1024), s5=(114688,1024,262144,128))[role]
    L=[]
    for mul,c,d in zip(m,(sC0,sC3,sC1,sC2),(sNSRC,sNFIN,sNOUT,sNFOUT)): L+=[f"s_mul_i32 s70, {i}, {mul}", f"s_add_u32 {s(d)}, s70, {s(c)}"]
    return L
rot=[f"s_mov_b32 {s(a)}, {s(b)}" for a,b in ((sSRC,sNSRC),(sFIN,sNFIN),(sOUT,sNOUT),(sFOUT,sNFOUT))]

def dense(A,opt,role):
    R=role; NK=28 if R=="s5" else 32; NT=3 if R=="s1" else 2; rm=R in("s1","s4"); ND=7 if R=="s5" else 8
    sc=" sc1" if rm else ""
    w=s(S_W); r=s(S_R); l=s(S_L)
    L=[]; E=L.append
    arrive(A)
    E(f"s_lshl_b32 {s(sM0)}, {w}, 10")
    E("v_lshrrev_b32 v66, 4, v0"); E("v_and_b32 v67, 15, v0")
    keys=dict(s1=("Wq","Wk","Wv"),s3=("Wo",),s4=("Wg","Wu"),s5=("Wd",))[R]
    size=dict(s1=4194304,s3=4194304,s4=1835008,s5=1835008)[R]; RSW=dict(s1=8192,s3=1024,s4=3584,s5=1024)[R]
    for i,k in enumerate(keys):
        E(f"s_load_dwordx2 {s(80+4*i,2)}, s[0:1], {KA[k]}"); E(f"s_mov_b32 {s(82+4*i)}, {size}"); E(f"s_mov_b32 {s(83+4*i)}, 0x20000")
    E(f"s_lshl_b32 s67, {w}, 2"); E("v_add_u32 v66, s67, v66"); E(f"v_mul_u32_u24 v66, {RSW}, v66")
    if rm: E("v_lshl_add_u32 v24, v67, 4, v66"); E(f"s_lshl_b32 {s(sK0)}, {r}, 8")
    else:
        E("v_lshrrev_b32 v68, 2, v67"); E("v_and_b32 v67, 3, v67"); E("v_lshl_add_u32 v66, v68, 7, v66"); E("v_lshl_add_u32 v24, v67, 4, v66")
        E(f"s_lshr_b32 s67, {r}, 1"); E(f"s_mul_i32 {s(sK0)}, s67, {NK*16*1024}"); E(f"s_and_b32 s68, {r}, 1"); E("s_lshl_b32 s68, s68, 9"); E(f"s_add_u32 {s(sK0)}, {s(sK0)}, s68")
    kinds=dict(s1=("qk","qk","nat"),s3=("nat","nat"),s4=("g","g"),s5=("nat","nat"))[R]
    tr={}
    for k in dict.fromkeys(kinds): tr[k]=28+4*len(tr); tr_addr(E,tr[k],k)
    E("s_waitcnt lgkmcnt(0)")
    A("\n".join(finalize(L))); L=[]; E=L.append
    panels=[]
    for t in range(NT):
        for p in range(NK//4):
            panels.append((80+(4*t if rm else 0), sK0, p*64*RSW+(0 if rm else 64*t), RSW, 24, tr[kinds[t]], t, 4*p, 4))
    load_weights(A,panels,NK)
    E("v_and_b32 v60, 31, v0"); E("v_lshrrev_b32 v61, 5, v0")
    if rm:
        E("v_and_b32 v62, 15, v0"); E("v_xor_b32 v62, v62, v61"); E("v_lshlrev_b32 v62, 4, v62"); E("v_lshl_add_u32 v62, v60, 10, v62")
        for b in range(8): E(f"v_xor_b32 {v(vRD+b)}, {32*b}, v62")
        E(f"s_and_b32 s67, {w}, 1"); E("s_lshl_b32 s67, s67, 3"); E("v_xor_b32 v62, s67, v0"); E("v_lshlrev_b32 v62, 4, v62")
        for j in range(8): E(f"v_xor_b32 v63, {16*j}, v62"); E(f"v_add_u32 {v(vDA+j)}, {1024*(j//4*4)}, v63")
        E(f"v_lshlrev_b32 {v(vFL)}, 5, v60"); E(f"s_lshl_b32 {s(sM0)}, {w}, 13")
    else:
        E(f"v_lshlrev_b32 {v(vRD)}, 4, v0"); E(f"v_lshlrev_b32 {v(vDA)}, 4, v0"); E(f"v_add_u32 {v(vDA+1)}, 4096, {v(vDA)}")
        E(f"s_mul_i32 {s(sM0)}, {w}, {ND*1024}")
    E(f"s_mov_b32 {s(sSTEP)}, 1"); E(f"s_mov_b32 {s(sA1)}, 0x1000"); E(f"s_mov_b32 {s(sA2)}, 0x1000"); E(f"s_mov_b32 {s(sA3)}, 64"); E(f"s_lshl_b32 {s(sID)}, {l}, 6")
    E(f"s_mov_b32 {s(sB1)}, 0"); E(f"s_mov_b32 {s(sB2)}, 0")
    E(f"s_lshl_b32 s69, {w}, 2")
    if R=="s1":
        N0=opt.get("N0",10); SS=opt.get("SS",36)
        E(f"s_mov_b32 {s(sID)}, {l}"); E(f"s_mov_b32 {s(sSTEP)}, 2"); E(f"s_mov_b32 {s(sA1)}, {N0}"); E(f"s_cmp_eq_u32 {l}, 0")
        for d,a,b in ((sB1,2*N0,64),(sA2,64-N0,N0+SS),(sB2,65+SS,64+SS),(sA3,64-N0+(64-SS)//2,N0+SS+(64-SS)//2)): E(f"s_mov_b32 s67, {b}"); E(f"s_cselect_b32 {s(d)}, {a}, s67")
        if opt.get("s1only0"): E(f"s_min_u32 {s(sA3)}, {s(sA3)}, {64-N0}"); E(f"s_cmp_eq_u32 {l}, 0"); E(f"s_cselect_b32 {s(sA3)}, {s(sA3)}, {N0}")
        E(f"s_add_u32 {s(sC0)}, {s(sM0)}, {XN}"); E(f"s_mul_i32 {s(sC1)}, {r}, 24576"); E(f"s_add_u32 {s(sC1)}, {s(sC1)}, {QKV}")
        E(f"s_lshl_b32 {s(sC2)}, {r}, 10"); E(f"s_add_u32 {s(sC2)}, {s(sC2)}, s69")
        E(f"s_lshl_b32 s67, {w}, 10"); E("v_lshlrev_b32 v62, 9, v61"); E("v_add_u32 v62, s67, v62")
        E("v_lshrrev_b32 v63, 4, v60"); E("v_and_b32 v64, 15, v60"); E("v_lshl_add_u32 v65, v63, 12, v62"); E("v_lshl_add_u32 v65, v64, 4, v65"); E(f"v_add_u32 {v(vST0)}, 16384, v65")
        E("v_bfe_u32 v64, v60, 3, 1"); E("v_lshl_add_u32 v65, v64, 12, v62"); E("v_bfe_u32 v64, v60, 2, 1"); E("v_lshl_add_u32 v65, v64, 7, v65"); E("v_lshl_add_u32 v65, v63, 6, v65")
        E("v_and_b32 v64, 3, v60"); E(f"v_lshl_add_u32 {v(vST1)}, v64, 4, v65")
        E("v_lshlrev_b32 v62, 1, v62"); E("v_lshl_add_u32 v62, v60, 4, v62"); E(f"v_add_u32 {v(vST2)}, 8192, v62")
    elif R=="s4":
        E(f"s_lshl_b32 s67, {l}, 21"); E(f"s_add_u32 {s(sC0)}, s67, {XN+0x200000}"); E(f"s_add_u32 {s(sC0)}, {s(sC0)}, {s(sM0)}")
        E(f"s_lshl_b32 s67, {l}, 16"); E(f"s_add_u32 {s(sC3)}, s67, {FN+65536}")
        E(f"s_lshl_b32 s67, {r}, 13"); E(f"s_lshl_b32 s68, {w}, 11"); E("s_add_u32 s67, s67, s68"); E(f"s_add_u32 {s(sC1)}, s67, {HB}")
        E(f"s_lshl_b32 s67, {r}, 6"); E("s_add_u32 s67, s67, s69"); E(f"s_add_u32 {s(sC2)}, s67, {FH}")
        E(f"v_lshlrev_b32 {v(vST0)}, 4, v0"); E(f"s_mov_b32 {s(sK0)}, 0xbfb8aa3b")
    else:
        E(f"s_lshr_b32 s70, {r}, 1"); E(f"s_and_b32 s71, {r}, 1")
        if R=="s3":
            E("s_lshl_b32 s67, s70, 15"); E(f"s_add_u32 s67, s67, {s(sM0)}"); E(f"s_lshl_b32 s68, {l}, 24"); E("s_sub_u32 s67, s67, s68"); E(f"s_add_u32 {s(sC0)}, s67, {OB}")
            E("s_lshl_b32 s67, s70, 7"); E(f"s_add_u32 {s(sC3)}, s67, {FO}"); E("v_and_b32 v62, 3, v0"); E(f"v_lshlrev_b32 {v(vFL)}, 5, v62")
        else:
            E("s_mul_i32 s67, s70, 28672"); E(f"s_add_u32 s67, s67, {s(sM0)}"); E(f"s_add_u32 {s(sC0)}, s67, {HB}")
            E(f"s_mov_b32 {s(sC3)}, {FH}"); E("v_min_u32 v62, 13, v0"); E("s_mul_i32 s67, s70, 14"); E("v_add_u32 v62, s67, v62")
            E("v_lshrrev_b32 v63, 2, v62"); E("v_and_b32 v62, 3, v62"); E("v_lshlrev_b32 v63, 6, v63"); E(f"v_lshl_add_u32 {v(vFL)}, v62, 2, v63")
        E("s_lshl_b32 s67, s70, 16"); E("s_lshl_b32 s68, s71, 10"); E("s_add_u32 s67, s67, s68"); E(f"s_lshl_b32 s68, {w}, 8"); E("s_add_u32 s67, s67, s68"); E(f"s_add_u32 {s(sC1)}, s67, {P3 if R=='s3' else P5}")
        E(f"s_lshl_b32 s67, {r}, 4"); E("s_add_u32 s67, s67, s69"); E(f"s_add_u32 {s(sC2)}, s67, {FP3 if R=='s3' else FP5}")
        E("v_lshlrev_b32 v62, 13, v61"); E(f"v_lshl_add_u32 {v(vST0)}, v60, 2, v62")
    L+=offsets(R)+rot+[f"s_mov_b32 {s(sI)}, 0"]+nexttask(R)+[f"s_mov_b32 {s(sISS)}, 0", f"s_mov_b32 {s(sPEND)}, {OOB}", f"v_mov_b32 {v(vT)}, 1"]
    A("\n".join(finalize(L)))
    wait_go(A); stamp(A,opt,0)
    def dmas(so,m0reg):
        o=[]
        for j in range(ND):
            if j%4==0: o.append([f"s_add_u32 s67, {s(m0reg)}, {4096*(j//4)}", "s_mov_b32 m0, s67"])
            else: o.append([])
            o[-1].append(f"buffer_load_dwordx4 {v(vDA+(j if rm else j//4))}, {WSS}, {s(so)} offen offset:{1024*(j%4)} sc1 lds ;@D")
        return o
    pub=["s_mov_b64 exec, 1", f"buffer_store_dword {v(vT)}, off, {WSS}, {s(sPEND)}{sc}", "s_mov_b64 exec, -1", f"s_mov_b32 {s(sPEND)}, {OOB}"]
    chk=[f"v_cmp_ne_u32 vcc, 0, {v(vF)}", "s_nop 0", "s_cmp_eq_u64 vcc, exec"]
    NST=dict(s1=6,s4=2,s3=32,s5=32)[R]
    lab=lambda x: f"L_{R}_{x}"
    A.label(lab("top"))
    A(f"s_cmp_lg_u32 {s(sISS)}, 0"); A(f"s_cbranch_scc1 {lab('iss')}")
    A("s_waitcnt vmcnt(0)"); A("\n".join(pub))
    A.label(lab("poll")); tmo(A)
    A(f"buffer_load_dword {v(vF)}, {v(vFL)}, {WSS}, {s(sFIN)} offen sc1"); A("s_waitcnt vmcnt(0)"); A("\n".join(chk)); A(f"s_cbranch_scc0 {lab('poll')}")
    A("\n".join(finalize([x for g in dmas(sSRC,sM0) for x in g]))); A("s_waitcnt vmcnt(0)"); A(f"s_branch {lab('go')}")
    A.label(lab("iss")); A(f"s_waitcnt vmcnt({NST})")
    L=[lab("go")+":", "s_barrier"]; E=L.append
    rd=lambda ks: (f"ds_read_b128 {v(AF+4*(ks%6),4)}, {v(vRD+(ks%8))} offset:{256*(ks//8)}" if rm else f"ds_read_b128 {v(AF+4*(ks%6),4)}, {v(vRD)} offset:{1024*ks}")
    L+=[rd(k) for k in range(5)]
    E(f"buffer_load_dword {v(vF)}, {v(vFL)}, {WSS}, {s(sNFIN)} offen sc1 ;@F")
    E(f"s_xor_b32 {s(sM0)}, {s(sM0)}, 32768")
    K1=opt.get("K1",10 if NT==3 else 12)
    dm=dmas(sDS,sM0)
    for ks in range(NK):
        x=AF+4*(ks%6); g=[]
        for t in range(NT):
            tr_=(R=="s4") or (R=="s1" and t<2)
            g.append(mf(ACC+16*t,wreg(t,ks,NK),x,ks==0) if tr_ else mf(ACC+16*t,x,wreg(t,ks,NK),ks==0))
        f={0:[rd(ks+5)] if ks+5<NK else []}
        if ks==K1: f[1]=["s_waitcnt vmcnt(0)"]+pub[:2]+pub[2:]+chk[:1]
        if ks==K1+1: f[1]=[chk[2], f"s_cselect_b32 {s(sISS)}, 1, 0", f"s_cmp_lt_u32 {s(sI)}, {s(sA3)}", f"s_cselect_b32 {s(sISS)}, {s(sISS)}, 1"]; f[0]=f[0]
        if ks==K1+2: f[1]=[f"s_cselect_b32 s68, {s(sNSRC)}, {OOB}", f"s_cmp_lg_u32 {s(sISS)}, 0", f"s_cselect_b32 {s(sDS)}, s68, {OOB}"]
        if K1+3<=ks<K1+3+ND: f[1]=dm[ks-K1-3]
        L+=weave(g,f)
    tog=[f"v_xor_b32 {v(vRD+b)}, 32768, {v(vRD+b)}" for b in range(8 if rm else 1)]
    L+=tog+[f"s_mov_b32 {s(sPEND)}, {s(sFOUT)}"]
    st=lambda rg,n,ad,off,so=sOUT: f"buffer_store_dword{'x4' if n==4 else ''} {v(rg,n)}, {v(ad)}, {WSS}, {s(so)} offen offset:{off}{sc}"
    if R=="s1":
        for t in range(3):
            for j in range(2):
                L+=[cvt(PK+8*t+4*j+e,ACC+16*t+8*j+2*e,ACC+16*t+8*j+2*e+1) for e in range(4)]
                E(st(PK+8*t+4*j,4,vST0+t,(512 if t==2 else 256)*j))
    elif R=="s4":
        G=ACC; U=ACC+16
        for j in range(2):
            rr=range(8*j,8*j+8)
            L+=[f"v_mul_f32 {v(G+i)}, {s(sK0)}, {v(G+i)}" for i in rr]+[f"v_exp_f32 {v(G+i)}, {v(G+i)}" for i in rr]+[f"v_add_f32 {v(G+i)}, 1.0, {v(G+i)}" for i in rr]
            L+=[f"v_rcp_f32 {v(G+i)}, {v(G+i)}" for i in rr]+[f"v_pk_mul_f32 {v(G+i,2)}, {v(G+i,2)}, {v(U+i,2)}" for i in rr if i%2==0]
            L+=[cvt(PK+4*j+e,G+8*j+2*e,G+8*j+2*e+1) for e in range(4)]; E(st(PK+4*j,4,vST0,1024*j))
    else:
        E(f"s_mov_b32 s68, {s(sOUT)}")
        for i in range(4):
            for r2 in range(2):
                for t in range(2):
                    for r1 in range(2): E(st(ACC+16*t+4*i+2*r2+r1,1,vST0,2048*r1+128*t,68))
                E(f"s_add_u32 s68, s68, {4096 if r2==0 else 12288}")
    E(f"s_cmp_ge_u32 {s(sI)}, {s(sA3)}"); E(f"s_cbranch_scc1 {lab('done')}")
    L+=rot+nexttask(R); E(f"s_branch {lab('top')}")
    body=finalize(L); body=align8(body) if opt.get("al",1) else body
    A(".p2align 3"); A("\n".join(body))
    A.label(lab("done")); A("s_waitcnt vmcnt(0)"); A("\n".join(pub)); stamp(A,opt,1); A("s_branch L_end")
    return check(body+body,R)
```

```python
from gen_common import *
LK=0; LV=8192; LM=16384; LQX=24576; LKX=LQX+2304; LOX=LKX+2304; LDUM=LOX+2304; LWV=32768; RS=288
vL16,vL8,vWV,vQW,vQR,vKR,vOW,vKS,vVR,vPST,vSL,vIDN,vIDX,vLW,vJ,vL4=range(16)
MF=16; AQ=48; AK=56; AV=64; QF=72; RG=88; WO=128
EB=[72,80,88,96,104,112,120]
sS=15; sPW0=16; sPW1=17; sPR=18; sMW=20; sMR=21; sMC=22; sKV=23; sKVv=24; sQ=25; sPF0=26
sOo=28; sFO=29; sFQ=30; sR1=31; sC=32; sM0K=33; sM0V=34; sH256=35; MSK=36; IDM=52; sSN=60; sMB=72; sQo=73; sPFo0=74; sPFo1=75; sFQn=76; sMRp=77; sP0=78; sP1=79; sPRp=19; sFOn=27; sMWp=75; sMCp=73
WSS=s(S_WS,4)
def smf(acc,a,b): return f"v_smfmac_f32_16x16x64_bf16 {v(acc,4)}, {v(a,4)}, {reg(b,8)}, {v(vIDX)}"
def mf32(d,a,b,c): return f"v_mfma_f32_16x16x32_bf16 {v(d,4)}, {v(a,4)}, {v(b,4)}, {c if c==0 else v(c,4)}"
def mf16(d,a,b,c): return f"v_mfma_f32_16x16x16_bf16 {v(d,4)}, {v(a,2)}, {v(b,2)}, {c if c==0 else v(c,4)}"
def dsr(d,addr,off,tag=""): return f"ds_read_b128 {v(d,4)}, {v(addr)} offset:{off}"+(f" ;@{tag}" if tag else "")
def z64(r): return f"v_mov_b64 {v(r,2)}, 0"
def cvt(d,a,b): return f"v_cvt_pk_bf16_f32 {v(d)}, {v(a)}, {v(b)}"
def add(d,a,b): return f"v_add_f32 {v(d)}, {v(a)}, {v(b)}"
def mov(d,x): return f"v_mov_b32 {v(d)}, {x}"
def wq(tile,t): return 256+(tile*8+t)*8
def wk(tile,t): return 256+128+(tile*8+t)*8
def wo(pi,k): return WO+(pi*4+k)*8
def wvrd(buf,n): return [dsr(buf,vWV,n*2048), dsr(buf+4,vWV,n*2048+1024)]
def preload(): return [x for n in range(7) for x in wvrd(EB[n],n)]

def prologue(A,opt):
    L=[]; E=L.append
    h=s(S_R); w=s(S_W); l=s(S_L)
    E("v_and_b32 v20, 15, v0"); E("v_lshrrev_b32 v21, 4, v0")
    E(f"v_lshlrev_b32 {v(vL4)}, 2, v0"); E("v_lshlrev_b32 v18, 3, v0"); E("v_lshlrev_b32 v0, 4, v0")
    E(f"s_lshl_b32 s68, {w}, 15"); E(f"s_add_u32 s68, s68, {LWV}"); E(f"v_add_u32 {v(vWV)}, s68, v0")
    E(f"s_lshl_b32 s69, {w}, 6")
    E("v_lshrrev_b32 v22, 2, v20"); E("v_and_b32 v23, 3, v20")
    E("v_and_b32 v24, 1, v20"); E("v_lshl_add_u32 v24, v22, 1, v24")
    E("v_lshrrev_b32 v25, 1, v23")
    E("v_and_b32 v26, 7, v20")
    E(f"v_mul_u32_u24 v27, {2*RS}, v21"); E("v_lshl_add_u32 v27, v20, 2, v27"); E(f"v_add_u32 v27, s69, v27"); E(f"v_add_u32 {v(vQW)}, {LQX}, v27")
    E(f"v_mul_u32_u24 v27, {RS}, v26"); E("v_lshl_add_u32 v27, v21, 4, v27"); E(f"v_add_u32 {v(vQR)}, {LQX}, v27")
    E(f"v_add_u32 v28, s69, v27"); E(f"v_add_u32 v29, {LOX}, v28")
    E(f"v_mul_u32_u24 v27, {RS}, v23"); E("v_lshl_add_u32 v27, v21, 4, v27"); E("v_add_u32 v27, s69, v27"); E(f"v_add_u32 v28, {LDUM}, v27")
    E("v_cmp_gt_u32 vcc, 8, v20"); E(f"v_cndmask_b32 {v(vOW)}, v28, v29, vcc")
    E(f"v_mul_u32_u24 v27, {RS}, v24"); E("v_lshl_add_u32 v28, v21, 4, v27"); E(f"v_add_u32 {v(vKR)}, {LKX}, v28")
    E(f"s_lshl_b32 s67, {w}, 10"); E(f"v_add_u32 {v(vL8)}, s67, v18")
    E("v_lshlrev_b32 v27, 7, v21"); E("v_lshl_add_u32 v27, v20, 2, v27"); E(f"v_add_u32 {v(vKS)}, s67, v27")
    E("v_lshlrev_b32 v17, 9, v21"); E("v_lshl_add_u32 v17, v20, 5, v17"); E(f"v_add_u32 v17, {LV}, v17")
    E(f"s_lshl_b32 s67, {w}, 11"); E(f"v_add_u32 {v(vVR)}, s67, v17"); E(f"v_add_u32 {v(vLW)}, s67, v0")
    E(f"s_add_u32 {s(sM0K)}, s67, {LK}"); E(f"s_add_u32 {s(sM0V)}, s67, {LV}")
    E("v_lshlrev_b32 v27, 13, v22"); E("v_lshl_add_u32 v27, v21, 11, v27"); E("v_lshl_add_u32 v27, v23, 4, v27")
    E(f"s_lshl_b32 s70, {w}, 16"); E(f"s_lshl_b32 s71, {h}, 6"); E("s_add_u32 s70, s70, s71"); E(f"v_add_u32 {v(vPST)}, s70, v27")
    E("v_mov_b32 v27, 0x4444"); E("v_mov_b32 v28, 0xeeee"); E("v_cmp_eq_u32 vcc, 1, v25"); E(f"v_cndmask_b32 {v(vIDX)}, v27, v28, vcc")
    E(f"s_mov_b32 {s(sSN)}, {SENT}"); E(f"s_mov_b32 {s(sSN+1)}, {SENT}")
    E(f"s_mov_b32 {s(sC)}, 0x3e0293ee")
    E(f"s_lshl_b32 {s(sH256)}, {h}, 8")
    E(f"s_lshl_b32 s67, {l}, 19"); E(f"s_add_u32 {s(sPW0)}, s67, {PR}"); E(f"s_add_u32 {s(sPW1)}, {s(sPW0)}, 32768")
    E(f"s_lshl_b32 s67, {h}, 13"); E(f"s_add_u32 {s(sPR)}, {s(sPW0)}, s67")
    E(f"s_lshl_b32 s67, {l}, 15"); E(f"s_add_u32 {s(sMB)}, s67, {MEMR}")
    E(f"s_lshl_b32 s67, {l}, 11"); E(f"s_add_u32 s67, s67, {h}")
    E(f"s_mul_i32 {s(sKV)}, s67, 24576"); E(f"s_add_u32 {s(sKV)}, {s(sKV)}, {QKV}")
    E(f"s_lshl_b32 {s(sOo)}, s67, 12"); E(f"s_add_u32 {s(sOo)}, {s(sOo)}, {KVM}")
    E(f"s_lshl_b32 {s(sFOn)}, s67, 5"); E(f"s_add_u32 {s(sFOn)}, {s(sFOn)}, {FM}"); E(f"s_cmp_eq_u32 {w}, 0"); E(f"s_cselect_b32 {s(sFOn)}, {s(sFOn)}, {OOB}")
    E(f"s_lshl_b32 s67, {l}, 5"); E(f"s_add_u32 s67, s67, {h}"); E(f"s_lshl_b32 {s(sFQ)}, s67, 10")
    E(f"s_mov_b32 {s(sS)}, 0"); E(f"s_mov_b32 {s(sR1)}, 0"); E(f"s_mov_b32 {s(sFO)}, {OOB}")
    E("v_lshl_add_u32 v27, v25, 1, v21"); E("v_lshlrev_b32 v27, 4, v27"); E("v_and_b32 v28, 1, v23"); E("v_lshl_add_u32 v27, v28, 3, v27"); E("v_add_u32 v27, s69, v27")
    E("v_lshl_add_u32 v28, v22, 1, v21"); E(f"v_mov_b32 v29, {OOB}"); E("v_cmp_gt_u32 vcc, 2, v28"); E(f"v_cndmask_b32 {v(vSL)}, v29, v27, vcc")
    E("v_and_b32 v27, 1, v20"); E("v_lshlrev_b32 v27, 4, v27"); E("v_mov_b32 v28, 0x3f80"); E(f"v_lshlrev_b32 {v(vIDN)}, v27, v28")
    E("v_lshrrev_b32 v27, 1, v26")
    for d in range(4): E(f"v_cmp_eq_u32 {s(IDM+2*d,2)}, {d}, v27")
    E(f"s_mov_b32 s67, {OOB}"); E(f"s_cmp_eq_u32 {w}, 1"); E(f"s_cselect_b32 {s(sPFo0)}, 786432, s67")
    E(f"v_mov_b64 v[32:33], {s(sSN,2)}"); E(f"v_mov_b64 v[34:35], {s(sSN,2)}"); E(f"s_xor_b32 s68, {s(sPR)}, 0x40000")
    for so in (sPR,68):
        for o in range(2): E(f"buffer_store_dwordx4 v[32:35], {v(vLW)}, {WSS}, {s(so)} offen offset:{1024*o}")
    E(f"s_add_u32 s67, {s(sMB)}, {s(sH256)}")
    for k in range(4):
        E(f"buffer_store_dwordx2 v[32:33], {v(vSL)}, {WSS}, s67 offen"); E("s_add_u32 s67, s67, 8192")
    A("\n".join(finalize(L)))
    arrive(A)
    L=[]; E=L.append
    E(f"s_mov_b32 {s(sP0)}, 0x05040100"); E(f"s_mov_b32 {s(sP1)}, 0x07060302")
    E("v_lshrrev_b32 v27, 1, v21"); E("v_and_b32 v28, 1, v21")
    E("v_lshlrev_b32 v29, 18, v27"); E("v_lshl_add_u32 v29, v28, 16, v29"); E("v_lshl_add_u32 v29, v20, 2, v29")
    E(f"s_add_u32 s67, {s(sH256)}, s69"); E("v_add_u32 v30, s67, v29")
    E("v_lshlrev_b32 v29, 13, v27"); E("v_lshl_add_u32 v29, v28, 12, v29"); E("v_lshl_add_u32 v29, v20, 4, v29")
    E(f"s_lshl_b32 s67, {h}, 17"); E(f"s_lshl_b32 s68, {w}, 8"); E("s_add_u32 s67, s67, s68"); E("v_add_u32 v31, s67, v29")
    E("v_lshlrev_b32 v29, 10, v24"); E("v_lshl_add_u32 v29, v21, 6, v29"); E("v_lshl_add_u32 v29, v25, 5, v29"); E("v_add_u32 v19, s68, v29")
    E(f"s_lshl_b32 s67, {w}, 11"); E("v_add_u32 v18, s67, v0")
    SR={"Wq":80,"Wk":84,"Wv":88,"Wo":92,"mem0":8}
    for k,b in SR.items():
        E(f"s_load_dwordx2 {s(b,2)}, s[0:1], {KA[k]}"); E(f"s_mov_b32 {s(b+2)}, {8192 if k=='mem0' else 4194304}"); E(f"s_mov_b32 {s(b+3)}, 0x20000")
    E("s_waitcnt lgkmcnt(0)")
    batches=[(m,t) for m in ("Wq","Wk","Wv") for t in range(8)]+[("Wo",x) for x in range(8)]
    ST=[32,48,64]; TP=80
    def issue(i):
        m,t=batches[i]; st=ST[i%3]
        if m!="Wo":
            for d8 in range(8):
                D,dd=d8//4,d8%4
                for e2 in range(2):
                    row=128*(t//2)+64*D+16*(dd%2)+4*(t%2)+2*(dd//2)+e2
                    E(f"s_mov_b32 s67, {row*8192}"); E(f"buffer_load_dword {v(st+2*d8+e2)}, v30, {s(SR[m],4)}, s67 offen")
        else:
            k,D=t//2,t%2
            for q in range(2):
                for e2 in range(2):
                    row=32*k+16*D+2*q+e2
                    E(f"s_mov_b32 s67, {row*1024}"); E(f"buffer_load_dwordx4 {v(st+8*q+4*e2,4)}, v31, {s(SR[m],4)}, s67 offen")
    def consume(i):
        m,t=batches[i]; st=ST[i%3]
        if m!="Wo":
            for tile in range(2):
                for d8 in range(8): E(f"v_perm_b32 {v(TP+8*tile+d8)}, {v(st+2*d8+1)}, {v(st+2*d8)}, {s(sP0+tile)}")
            if m=="Wv":
                for tile in range(2):
                    for hf in range(2): E(f"ds_write_b128 {v(vWV)}, {v(TP+8*tile+4*hf,4)} offset:{(2*t+tile)*2048+hf*1024}")
            else:
                for tile in range(2):
                    base=(wq if m=="Wq" else wk)(tile,t)
                    for d8 in range(8): E(f"v_accvgpr_write_b32 {reg(base+d8)}, {v(TP+8*tile+d8)}")
        else:
            k,D=t//2,t%2
            for q in range(2):
                for hi in range(2):
                    for pi in range(4): E(f"v_perm_b32 {v(wo(pi,k)+4*D+2*q+hi)}, {v(st+8*q+4+pi)}, {v(st+8*q+pi)}, {s(sP0+hi)}")
    issue(0); issue(1)
    for i in range(len(batches)):
        if i+2<len(batches): issue(i+2)
        consume(i)
    for tt in range(2):
        for eh in range(2): E(f"buffer_load_dwordx2 {v(96+4*tt+2*eh,2)}, v19, s[8:11], 0 offen offset:{16*eh+8*tt}")
    for tt in range(2): E(f"ds_write_b128 v18, {v(96+4*tt,4)} offset:{LM+1024*tt}")
    for r in range(AQ,AQ+24,2): E(z64(r))
    E("@wait vm=all lg=all")
    A("\n".join(finalize(L)))
    wait_go(A)
    A("\n".join(finalize(preload()+book(True)+[f"v_lshlrev_b32 {v(vJ)}, 3, {v(vL16)}","@wait lg=all"])))

def xmax(mx,t,fill1,fill2):
    return [f"v_mov_b32 {v(t)}, {v(mx)}"]+fill1+[f"v_permlane32_swap_b32 {v(mx)}, {v(t)}", f"v_max_f32 {v(mx)}, {v(mx)}, {v(t)}",
            f"v_mov_b32 {v(t)}, {v(mx)}"]+fill2+[f"v_permlane16_swap_b32 {v(mx)}, {v(t)}", f"v_max_f32 {v(mx)}, {v(mx)}, {v(t)}"]
def place(n, fixed, queue):
    f={k:list(x) for k,x in fixed.items()}; cur=0
    for lo,x in queue:
        cur=max(cur,lo)
        while cur in f and cur<n-1: cur+=1
        f.setdefault(cur,[]).append(x)
    return f

def book(first=False):
    L=[]
    if not first:
        L+=[f"s_add_u32 {s(sS)}, {s(sS)}, 1", f"s_mov_b32 {s(sPRp)}, {s(sPR)}"]+[f"s_xor_b32 {s(r)}, {s(r)}, 0x40000" for r in (sPW0,sPW1,sPR)]
        L+=[f"s_add_u32 {s(sKV)}, {s(sKV)}, 786432", f"s_mov_b32 {s(sFQ)}, {s(sFQn)}", f"s_mov_b32 {s(sMRp)}, {s(sMR)}", f"s_mov_b32 {s(sMWp)}, {s(sMW)}", f"s_mov_b32 {s(sMCp)}, {s(sMC)}",
            f"s_add_u32 {s(sOo)}, {s(sOo)}, 131072", f"s_mov_b32 {s(sFO)}, {s(sFOn)}", f"s_add_u32 {s(sFOn)}, {s(sFOn)}, 1024"]
    L+=[f"s_add_u32 {s(sKVv)}, {s(sKV)}, 8192", f"s_cmp_lt_u32 {s(sS)}, 63", "s_cselect_b32 s68, 16, 0",
        f"s_cselect_b32 s67, {s(sPFo0)}, {OOB}", f"s_add_u32 {s(sFQn)}, {s(sFQ)}, s68", f"s_add_u32 {s(sPF0)}, {s(sKV)}, s67",
        f"s_add_u32 s67, {s(sS)}, 1", "s_and_b32 s67, s67, 3", "s_lshl_b32 s67, s67, 13", f"s_add_u32 {s(sMR)}, {s(sMB)}, s67",
        f"s_add_u32 {s(sMW)}, {s(sMR)}, {s(sH256)}", f"s_xor_b32 {s(sMC)}, {s(sMW)}, 0x2000", f"s_and_b32 s67, {s(sS)}, 1", "s_lshl_b32 s67, s67, 14", f"s_xor_b32 {s(sMC)}, {s(sMC)}, s67"]
    return L

def step(opt):
    L=[]; E=L.append
    def X(lst): L.extend(lst)
    def MK(i):
        if opt.get("prof")!=1: return []
        return ["s_memtime s[98:99]","s_waitcnt lgkmcnt(0)","s_sub_u32 s81, s98, s80",f"s_add_u32 s{82+i}, s{82+i}, s81","s_mov_b32 s80, s98"]
    def TL(i):
        if not opt.get("tl"): return []
        o=[f"s_memrealtime s[{82+2*i}:{83+2*i}]","s_waitcnt lgkmcnt(0)"]
        if i==2:
            o+=[f"v_mov_b32 v{24+j}, s{82+2*j}" for j in range(4)]
            o+=[f"s_lshl_b32 s67, {s(S_R)}, 2", f"s_add_u32 s67, s67, {s(S_W)}", "s_lshl_b32 s67, s67, 6", f"s_add_u32 s67, s67, {s(sS)}", "s_lshl_b32 s67, s67, 4", f"s_add_u32 s67, s67, {PROF+0x10000}",
                f"buffer_store_dwordx4 v[24:27], off, {WSS}, s67"]
        return o
    def DBG(name):
        d=opt.get("dump")
        if not d or d[0]!=name: return
        E(f"s_cmp_lg_u32 {s(sS)}, {d[2]}"); E("s_cbranch_scc1 L_dbg_skip")
        E("@wait vm=all lg=all"); E("s_nop 15")
        E(f"s_lshl_b32 s67, {s(S_R)}, 2"); E(f"s_add_u32 s67, s67, {s(S_W)}"); E("s_lshl_b32 s67, s67, 15"); E(f"s_add_u32 s67, s67, {P3}")
        for r in d[1]:
            E(f"buffer_store_dword {v(r)}, {v(vL4)}, {WSS}, s67 offen"); E("s_add_u32 s67, s67, 256"); E("s_waitcnt vmcnt(0)")
        E("s_endpgm"); E("L_dbg_skip:")
    OX=120
    E("L_rec_step:")
    X(TL(3)); E("s_barrier"); X(TL(0)); X(MK(0))
    for t in range(8): E(dsr(MF+4*t,vL16,LM+1024*t,f"m{t}"))
    dma=lambda ad,so,o,tg: f"buffer_load_dwordx4 {v(ad)}, {WSS}, {s(so)} offen offset:{o} sc1 lds ;@{tg}" if not opt.get("noKV") else "s_nop 0"
    vb=[EB[n%7] for n in range(14)]+[104,112]
    vs=[smf(AV+4*(n%2),MF+4*(n//2),vb[n]) for n in range(16)]
    R_=lambda n: wvrd(vb[n],n)
    qs=[smf(AQ+4*(n%2),MF+4*(n//2),wq(n%2,n//2)) for n in range(16)]
    ks=[smf(AK+4*(n%2),MF+4*(n//2),wk(n%2,n//2)) for n in range(16)]
    bb=[]
    for n in range(16):
        bb.append(qs[n])
        if n%2==1 and n<14: bb.append(vs[n//2])
    nq=len(bb); bb+=vs[7:13]+ks; pos={x:i for i,x in enumerate(bb)}
    pf=f"buffer_load_dword {v(vJ)}, {v(vJ)}, {WSS}, {s(sPF0)} offen sc1 ;@P" if not opt.get("nopf") else "s_nop 0"
    fixed={2:["@wait lg=m3"], 8:["@wait lg=m5"], 14:["@wait lg=m7"]}
    E(f"s_cmp_lg_u32 {s(sR1)}, 15"); E("s_cbranch_scc1 L_rec_spin"); E("L_rec_spun:")
    X([f"s_mov_b32 m0, {s(sM0K)}", "s_nop 0", dma(vLW,sKV,0,"K")])
    fixed.update({0:[dma(vLW,sKV,1024,"K")], 1:[f"s_mov_b32 m0, {s(sM0V)}"], 3:[dma(vLW,sKVv,0,"V")], 5:[dma(vLW,sKVv,1024,"V")], 7:[pf],
                  10:[f"buffer_store_dword {v(vIDX)}, off, {WSS}, {s(sFO)} sc1" if not opt.get("noFO") else "s_nop 0"],
                  22:[f"buffer_load_dword {v(vJ)}, {v(vL4)}, {WSS}, {s(sFQn)} offen sc1 ;@F"]})
    E("@wait lg=m1")
    queue=[(pos[vs[n-7]],x) for n in range(7,14) for x in R_(n)]
    q0=nq+3
    fixed.update({q0:[add(AQ,AQ,AQ+2)], q0+1:[add(AQ+1,AQ+1,AQ+3), add(AQ+4,AQ+4,AQ+6)], q0+2:[add(AQ+5,AQ+5,AQ+7), cvt(AQ+2,AQ,AQ+4)],
       q0+3:[cvt(AQ+3,AQ+1,AQ+5), f"ds_write_b32 {v(vQW)}, {v(AQ+2)} ;@q"], q0+4:[f"ds_write_b32 {v(vQW)}, {v(AQ+3)} offset:{RS} ;@q"]})
    KF=lambda a_,k: RG+8*k+4*a_
    rd=[]
    for k in range(4): rd+=[dsr(QF+4*k,vQR,64*k), dsr(KF(0,k),vL16,LK+1024*k), dsr(KF(1,k),vL16,LK+4096+1024*k)]
    b2=q0+7
    fixed[b2]=MK(1)+["@wait vm=K lg=q","s_barrier"]+MK(2)
    f={k:list(x) for k,x in fixed.items()}; cur=0
    for lo,x in queue:
        cur=max(cur,lo)
        while len(f.get(cur,[]))>=1 and cur<nq-3: cur+=1
        while len(f.get(cur,[]))>=2: cur+=1
        f.setdefault(cur,[]).append(x)
    f=place(len(bb),f,[(b2+1,x) for x in rd])
    X(weave(bb,f))
    SX=AQ; SM=60; KM=RG
    xs=[mf32(SX+4*(n%2),KF(n%2,n//2),QF+4*(n//2),0 if n<2 else SX+4*(n%2)) for n in range(8)]
    X([xs[0],xs[1]])
    X([add(AK,AK,AK+2),add(AK+1,AK+1,AK+3),add(AK+4,AK+4,AK+6),add(AK+5,AK+5,AK+7), cvt(AK+2,AK,AK+4), cvt(AK+3,AK+1,AK+5),
       f"ds_write_b32 {v(vQW)}, {v(AK+2)} offset:2304 ;@k", f"ds_write_b32 {v(vQW)}, {v(AK+3)} offset:{2304+RS} ;@k"])
    kst=[f"buffer_store_dword {v(AK+2+r)}, {v(vKS)}, {WSS}, {s(sOo)} offen offset:{64*r} sc1" if not opt.get("noO") else "s_nop 0" for r in range(2)]
    X([xs[2],kst[0],xs[3],kst[1]]+xs[4:6]); X(MK(3)); E("@wait lg=k"); E("s_barrier"); X(MK(4))
    for k in range(4): E(dsr(KM+4*k,vKR,64*k))
    X(R_(14)[:1]+[xs[6]]+R_(14)[1:]+[xs[7]]+R_(15)[:1]+[vs[13]]+R_(15)[1:])
    mt=[mf32(SM,KM+4*k,QF+4*k,0 if k==0 else SM) for k in range(4)]
    MX=56; TT=57; ON=88; QX=32
    X([mt[0], f"v_max3_f32 {v(MX)}, {v(SX)}, {v(SX+1)}, {v(SX+2)}", mt[1], f"v_max3_f32 {v(MX)}, {v(MX)}, {v(SX+3)}, {v(SX+4)}",
       mt[2], f"v_max3_f32 {v(MX)}, {v(MX)}, {v(SX+5)}, {v(SX+6)}", mt[3], f"v_max_f32 {v(MX)}, {v(MX)}, {v(SX+7)}"])
    X([vs[14], "@wait vm=V", dsr(72,vVR,0), vs[15], dsr(76,vVR,16)])
    X(MK(5))
    on=[mov(ON+i,"0x3f803f80") for i in range(4)]
    E(f"v_max3_f32 {v(MX)}, {v(MX)}, {v(SM)}, {v(SM+1)}")
    X(xmax(MX,TT,on[0:2],on[2:4]))
    E(f"v_mul_f32 {v(TT)}, {s(sC)}, {v(MX)}")
    vals=[SX+i for i in range(8)]+[SM,SM+1]
    fma=[f"v_fma_f32 {v(r)}, {v(r)}, {s(sC)}, -{v(TT)}" for r in vals]; ex=[f"v_exp_f32 {v(r)}, {v(r)}" for r in vals]
    PX=56; PB0=62; PB1=66; VM=64; O0=48; O1=52; OS=16; AO=96
    X([fma[0],fma[1],ex[0],fma[2],ex[1],fma[3],ex[2],fma[4],ex[3],fma[5],ex[4],fma[6],ex[5],fma[7],ex[6],fma[8],ex[7],fma[9],
        cvt(PX,SX,SX+1),ex[8],cvt(PX+1,SX+2,SX+3),ex[9],cvt(PX+2,SX+4,SX+5),cvt(PX+3,SX+6,SX+7)])
    X(MK(6))
    X([add(AV,AV,AV+2),add(AV+1,AV+1,AV+3), mf32(OS,ON,PX,0), add(AV+4,AV+4,AV+6),add(AV+5,AV+5,AV+7), mf32(O0,72,PX,0),
       cvt(PB0,SM,SM+1),mov(PB0+1,0), mf32(O1,76,PX,0), cvt(VM,AV,AV+1),cvt(VM+1,AV+4,AV+5)])
    X([mf16(OS,ON,PB0,OS), cvt(PB1+1,SM,SM+1),mov(PB1,0), mf16(O0,VM,PB0,O0), z64(AO), z64(AO+2), mf16(O1,VM,PB1,O1)])
    X([f"buffer_store_dwordx2 {v(VM,2)}, {v(vL8)}, {WSS}, {s(sOo)} offen offset:512 sc1" if not opt.get("noO") else "s_nop 0"]+[z64(AO+4), f"v_rcp_f32 {v(OS)}, {v(OS)}"]+[z64(r) for r in range(AO+6,AO+16,2)])
    X([f"v_pk_mul_f32 {v(r,2)}, {v(r,2)}, {v(OS,2)} op_sel_hi:[1,0]" for r in range(48,56,2)])
    X([cvt(56+r,O0+r,O1+r) for r in range(4)])
    E(f"ds_write_b128 {v(vOW)}, {v(56,4)} ;@o"); DBG("o")
    IDA=32; RA=36; PL=16; HP=16; SQ=40
    X([f"v_cndmask_b32 {v(IDA+d)}, 0, {v(vIDN)}, {s(IDM+2*d,2)}" for d in range(4)])
    X(MK(7)); E("@wait lg=all"); E("s_barrier"); X(MK(8))
    OF=72
    X([dsr(OF+4*k,vKR,2304+64*k) for k in range(4)])
    zz=[z64(r) for r in range(AQ,AQ+24,2)]
    X(zz[:8])
    bb=[smf(AO+4*pi,OF+4*k,wo(pi,k)) for u in range(2) for k in range(4) for pi in (2*u,2*u+1)]
    def post(u):
        b=AO+8*u; d=112+4*u
        return [cvt(d,b,b+2),cvt(d+1,b+4,b+6),cvt(d+2,b+1,b+3),cvt(d+3,b+5,b+7), f"buffer_store_dwordx4 {v(d,4)}, {v(vPST)}, {WSS}, {s(sPW0+u)} offen ;@S"]
    p0=post(0); f={11:p0[0:1],12:p0[1:2],13:p0[2:3],14:p0[3:4],15:p0[4:5]}
    f=place(16,f,[(7,x) for x in zz[8:]])
    X(weave(bb,f))
    X(post(1)); X(tl(opt,0,sS,44)); X(TL(1)); DBG("f"); X(MK(9))
    def sentchk(b,n,t):
        r=list(range(b,b+n)); o=[f"v_max3_i32 {v(t)}, {v(r[0])}, {v(r[1])}, {v(r[2])}"]; r=r[3:]
        while len(r)>1: o.append(f"v_max3_i32 {v(t)}, {v(t)}, {v(r[0])}, {v(r[1])}"); r=r[2:]
        if r: o.append(f"v_max_i32 {v(t)}, {v(t)}, {v(r[0])}")
        return o+[f"v_cmp_eq_u32 vcc, {s(sSN)}, {v(t)}"]
    pl1=[f"buffer_load_dwordx4 {v(PL+4*i,4)}, {v(vLW)}, {WSS}, {s(sPRp)} offen offset:{1024*i} sc1" for i in range(2)]
    pl2=[f"buffer_load_dwordx4 {v(HP+4*i,4)}, {v(vLW)}, {WSS}, {s(sMRp)} offen offset:{1024*i} sc1" for i in range(2)]
    pre=preload(); np1=opt.get("np1",6)
    E(f"s_cmp_eq_u32 {s(sS)}, 63"); E("s_cbranch_scc1 L_rec_done")
    X(book()+[f"v_mov_b64 {v(SQ,2)}, {s(sSN,2)}", f"v_mov_b64 {v(SQ+2,2)}, {s(sSN,2)}"]+pre[:np1]+["s_nop 7"]*opt.get("d1",8)+pl1)
    X(MK(10)); E("L_rec_g:"); E("s_waitcnt vmcnt(0)")
    X([mf32(RA,IDA,PL,0), mf32(RA,IDA,PL+4,RA)])
    X(sentchk(PL,8,44))
    for rot in (4,8): X([f"v_add_f32_dpp {v(RA+i)}, {v(RA+i)}, {v(RA+i)} row_ror:{rot} row_mask:0xf bank_mask:0xf" for i in range(4)])
    X([cvt(RA,RA,RA+1),cvt(RA+1,RA+2,RA+3)]); E("s_cbranch_vccnz L_rec_g_retry")
    E(f"buffer_store_dwordx2 {v(RA,2)}, {v(vSL)}, {WSS}, {s(sMWp)} offen")
    X(TL(2)); DBG("g"); X(MK(11))
    clr=[f"buffer_store_dwordx4 {v(SQ,4)}, {v(vLW)}, {WSS}, {s(sPRp)} offen offset:{1024*i}" for i in range(2)]+[f"buffer_store_dwordx2 {v(SQ,2)}, {v(vSL)}, {WSS}, {s(sMCp)} offen"]
    late=opt.get("clrlate",1)
    X([f"v_cmp_ne_u32 vcc, 0, {v(vJ)}"]+pre[np1:]+([] if late else clr)+[f"v_lshlrev_b32 {v(vJ)}, 3, {v(vL16)}", f"s_and_b32 {s(sR1)}, vcc_lo, 15"]+["s_nop 7"]*opt.get("d2",4)+pl2+(clr if late else []))
    X(MK(12)); E("@wait lg=all"); E("s_branch L_rec_top")
    E("L_rec_end:")
    L[:0]=["L_rec_top:", f"s_waitcnt vmcnt({3 if late else 0})", "L_rec_h2:"]+[f"ds_write_b128 {v(vLW)}, {v(HP+4*i,4)} offset:{LM+1024*i}" for i in range(2)]+sentchk(HP,8,44)+["@wait lg=all","s_cbranch_vccnz L_rec_h2_retry"]+MK(13)
    fin=finalize(L)
    return (align8(fin) if opt.get('al',1) else fin), pl1, pl2

def rec(A,opt):
    prologue(A,opt)
    stamp(A,opt,0)
    if opt.get("prof"):
        for i in range(16): A(f"s_mov_b32 s{82+i}, 0")
        A("s_memtime s[98:99]"); A("s_waitcnt lgkmcnt(0)"); A("s_mov_b32 s80, s98")
    cnt=lambda r: A(f"s_add_u32 s{r}, s{r}, 1" if opt.get("prof") else "s_nop 0")
    body,pl1,pl2=step(opt)
    A("s_branch L_rec_step"); A(".p2align 3"); A("\n".join(body))
    A.label("L_rec_g_retry"); tmo(A); cnt(96); A("s_nop 7"); A("\n".join(pl1)); A("s_branch L_rec_g")
    A.label("L_rec_h2_retry"); tmo(A); cnt(97); A("\n".join(pl2)); A("s_waitcnt vmcnt(0)"); A("s_branch L_rec_h2")
    A.label("L_rec_spin"); tmo(A)
    A(f"buffer_load_dword {v(vJ)}, {v(vL4)}, {WSS}, {s(sFQ)} offen sc1"); A("s_waitcnt vmcnt(0)")
    A(f"v_cmp_ne_u32 vcc, 0, {v(vJ)}"); A(f"v_lshlrev_b32 {v(vJ)}, 3, {v(vL16)}"); A("s_nop 3"); A(f"s_and_b32 {s(sR1)}, vcc_lo, 15"); A(f"s_cmp_lg_u32 {s(sR1)}, 15")
    A("s_cbranch_scc1 L_rec_spin"); A("s_branch L_rec_spun")
    A.label("L_rec_done")
    A("s_waitcnt vmcnt(0)"); A("s_barrier"); A(f"buffer_store_dword {v(vIDX)}, off, {WSS}, {s(sFOn)} sc1")
    stamp(A,opt,1)
    if opt.get("prof"):
        A(f"s_lshl_b32 s67, {s(S_XCC)}, 5"); A(f"s_add_u32 s67, s67, {s(S_R)}"); A("s_lshl_b32 s67, s67, 2"); A(f"s_add_u32 s67, s67, {s(S_W)}"); A("s_lshl_b32 s67, s67, 6"); A(f"s_add_u32 s67, s67, {PROF}")
        for i in range(16): A(f"v_mov_b32 v{16+i}, s{82+i}")
        A("s_mov_b64 exec, 1")
        for i in range(4): A(f"buffer_store_dwordx4 v[{16+4*i}:{19+4*i}], off, {WSS}, s67 offset:{16*i}")
        A("s_waitcnt vmcnt(0)")
    A("s_branch L_end")
    return check(body+body,"rec")
```

```python
from gen_common import *
from gen_rec import cvt
WSS=s(S_WS,4)
vL16,vL8,vF3a,vF5a,vF3,vF5,vOne=1,2,3,4,5,6,7
X=8; T=16; RES=24; PP=32; LB=128
s3=15; s5=16; sROW=17; sP=18; sR=19; sO=20; sN=21; sF=22; sF3=23; sF5=24; sEPS=25; sInv=26
SX=28; SO=32
def wsum(r,t):
    o=[f"v_add_f32_dpp {v(r)}, {v(r)}, {v(r)} row_ror:{k} row_mask:0xf bank_mask:0xf" for k in (1,2,4,8)]
    for sw in ("16","32"): o+=[f"v_mov_b32 {v(t)}, {v(r)}", f"v_permlane{sw}_swap_b32 {v(r)}, {v(t)}", f"v_add_f32 {v(r)}, {v(r)}, {v(t)}"]
    return o
def unpack(d,src,n=4):
    o=[]
    for i in range(n): o+=[f"v_lshlrev_b32 {v(d+2*i)}, 16, {v(src+i)}", f"v_and_b32 {v(d+2*i+1)}, 0xffff0000, {v(src+i)}"]
    return o
def rnd(r): return [cvt(r,r,r), f"v_lshlrev_b32 {v(r)}, 16, {v(r)}"]
def ln(out):
    m=T; q=T+1; t=T+2; D=T+4-4
    o=[f"v_add_f32 {v(m)}, {v(X)}, {v(X+1)}"]+[f"v_add_f32 {v(m)}, {v(m)}, {v(X+i)}" for i in range(2,8)]+wsum(m,t)+[f"v_mul_f32 {v(m)}, {s(sInv)}, {v(m)}"]
    o+=[f"v_sub_f32 {v(t)}, {v(X)}, {v(m)}", f"v_mul_f32 {v(q)}, {v(t)}, {v(t)}"]
    for i in range(1,8): o+=[f"v_sub_f32 {v(t)}, {v(X+i)}, {v(m)}", f"v_fmac_f32 {v(q)}, {v(t)}, {v(t)}"]
    o+=wsum(q,t)+[f"v_mul_f32 {v(q)}, {s(sInv)}, {v(q)}"]+rnd(q)+[f"v_add_f32 {v(q)}, {s(sEPS)}, {v(q)}"]+rnd(q)+[f"v_sqrt_f32 {v(q)}, {v(q)}"]+rnd(m)+rnd(q)+[f"v_rcp_f32 {v(q)}, {v(q)}"]
    o+=[f"v_sub_f32 {v(X+i)}, {v(X+i)}, {v(m)}" for i in range(8)]+[cvt(out+i,X+2*i,X+2*i+1) for i in range(4)]+unpack(X,out)
    o+=[f"v_mul_f32 {v(X+i)}, {v(X+i)}, {v(q)}" for i in range(8)]+[cvt(out+i,X+2*i,X+2*i+1) for i in range(4)]
    return o
def st2(r,srd,so,sc,tag=""): return [f"buffer_store_dwordx2 {v(r+2*u,2)}, {v(vL8)}, {srd}, {s(so)} offen offset:{512*u}{sc}{tag}" for u in range(2)]
def flag(so): return ["s_mov_b64 exec, 1", f"buffer_store_dword {v(vOne)}, off, {WSS}, {s(so)} sc1", "s_mov_b64 exec, -1"]
def red(A,opt):
    arrive(A)
    L=[]; E=L.append; l=s(S_L)
    for b,k in ((SX,"x"),(SO,"out")): E(f"s_load_dwordx2 {s(b,2)}, s[0:1], {KA[k]}"); E(f"s_mov_b32 {s(b+2)}, 2097152"); E(f"s_mov_b32 {s(b+3)}, 0x20000")
    E(f"v_lshlrev_b32 {v(vL16)}, 4, v0"); E(f"v_lshlrev_b32 {v(vL8)}, 3, v0"); E(f"v_lshlrev_b32 {v(vF3a)}, 2, v0"); E(f"v_and_b32 {v(vF5a)}, 127, {v(vF3a)}"); E(f"v_mov_b32 {v(vOne)}, 1")
    E(f"s_lshl_b32 {s(sROW)}, {s(S_R)}, 2"); E(f"s_add_u32 {s(sROW)}, {s(sROW)}, {s(S_W)}")
    E(f"s_mov_b32 {s(sEPS)}, 0x3727c5ac"); E(f"s_mov_b32 {s(sInv)}, 0x3b000000"); E(f"s_mov_b32 {s(s3)}, 0"); E(f"s_mov_b32 {s(s5)}, 0")
    E(f"s_lshl_b32 s67, {l}, 5"); E(f"s_add_u32 s67, s67, {s(sROW)}"); E(f"s_lshl_b32 {s(sR)}, s67, 10"); E(f"s_add_u32 {s(sN)}, {s(sR)}, {XN}"); E("s_lshl_b32 s67, s67, 5"); E(f"s_add_u32 {s(sF)}, s67, {FN}")
    E("s_waitcnt lgkmcnt(0)")
    if not opt.get("noln0"):
        for i in range(32):
            L+=[f"buffer_load_dwordx2 {v(LB+4*i+2*u,2)}, {v(vL8)}, {s(SX,4)}, {s(sR)} offen offset:{512*u}" for u in range(2)]; E(f"s_add_u32 {s(sR)}, {s(sR)}, 65536")
            if i==15: E("s_waitcnt vmcnt(16)")
    E("s_waitcnt vmcnt(0)")
    A("\n".join(finalize(L))); wait_go(A); stamp(A,opt,0)
    if not opt.get("noln0"):
        L=[]; E=L.append
        for i in range(32):
            o=PP+4*(i%4)
            L+=unpack(X,LB+4*i)+ln(o)+st2(o,WSS,sN," sc1",f" ;@r{i}"); E(f"s_add_u32 {s(sN)}, {s(sN)}, 65536")
            if i>=1: E(f"@wait vm=r{i-1}"); L+=flag(sF); E(f"s_add_u32 {s(sF)}, {s(sF)}, 2048")
        E("@wait vm=all"); L+=flag(sF)
        A("\n".join(finalize(L)))
    errs=[]
    A(f"s_cmp_eq_u32 {l}, 1"); A("s_cbranch_scc1 L_red1_top")
    for ly in range(2):
        lab=lambda x:f"L_red{ly}_{x}"
        L=[lab("top")+":"]; E=L.append
        L+=[f"s_cmp_ge_u32 {s(s5)}, 64", f"s_cbranch_scc1 {lab('done')}", f"s_sub_u32 {s(S_TMO)}, {s(S_TMO)}, 1", "s_cbranch_scc1 L_abort",
            f"s_lshl_b32 s67, {s(s5)}, 7", f"s_add_u32 {s(sF5)}, s67, {FP5+ly*8192}", f"s_lshl_b32 s67, {s(s3)}, 8", f"s_add_u32 {s(sF3)}, s67, {FP3+ly*16384}",
            f"s_cmp_lt_u32 {s(s3)}, 64", f"s_cselect_b32 {s(sF3)}, {s(sF3)}, {OOB}",
            f"buffer_load_dword {v(vF5)}, {v(vF5a)}, {WSS}, {s(sF5)} offen sc1", f"buffer_load_dword {v(vF3)}, {v(vF3a)}, {WSS}, {s(sF3)} offen sc1", "s_waitcnt vmcnt(0)",
            f"v_cmp_ne_u32 vcc, 0, {v(vF5)}", f"v_cmp_ne_u32 s[68:69], 0, {v(vF3)}", "s_nop 0", "s_cmp_eq_u64 vcc, exec", f"s_cbranch_scc1 {lab('r5')}",
            "s_cmp_eq_u64 s[68:69], exec", f"s_cbranch_scc0 {lab('top')}"]
        for st in (3,5):
            sg=s3 if st==3 else s5; NP=8 if st==3 else 4
            if st==5: E(lab("r5")+":")
            L+=[f"s_lshl_b32 s67, {s(sg)}, {19 if st==3 else 18}", f"s_lshl_b32 s68, {s(sROW)}, 11", "s_add_u32 s67, s67, s68", f"s_add_u32 {s(sP)}, s67, {(P3+ly*(32<<20)) if st==3 else (P5+ly*(16<<20))}"]
            for k in range(NP):
                L+=[f"buffer_load_dwordx4 {v(PP+8*k+4*u,4)}, {v(vL16)}, {WSS}, {s(sP)} offen offset:{1024*u} sc1" for u in range(2)]
                if k<NP-1: E(f"s_add_u32 {s(sP)}, {s(sP)}, 65536")
            L+=[f"s_lshl_b32 s67, {s(sg)}, 5", f"s_add_u32 s67, s67, {s(sROW)}", "s_lshl_b32 s68, s67, 10", "s_lshl_b32 s67, s67, 5"]
            stage=2*ly+(1 if st==3 else 2)
            final=(stage==4)
            if stage==1: rs,ro,rc=s(SX,4),0,""
            else: rs,ro,rc=WSS,XR+(stage-2)*0x200000," sc1"
            L+=[f"s_add_u32 {s(sR)}, s68, {ro}"]+[f"buffer_load_dwordx2 {v(RES+2*u,2)}, {v(vL8)}, {rs}, {s(sR)} offen offset:{512*u}{rc}" for u in range(2)]
            L+=[f"s_add_u32 {s(sO)}, s68, {0 if final else XR+(stage-1)*0x200000}", f"s_add_u32 {s(sN)}, s68, {XN+stage*0x200000}", f"s_add_u32 {s(sF)}, s67, {FN+stage*65536}", f"s_add_u32 {s(sg)}, {s(sg)}, 1"]
            for k in range(1,NP): L+=[f"v_pk_add_f32 {v(PP+i,2)}, {v(PP+i,2)}, {v(PP+8*k+i,2)}" for i in range(0,8,2)]
            L+=[cvt(T+4+i,PP+2*i,PP+2*i+1) for i in range(4)]+unpack(PP,T+4)+unpack(X,RES)+[f"v_pk_add_f32 {v(X+i,2)}, {v(X+i,2)}, {v(PP+i,2)}" for i in range(0,8,2)]
            L+=[cvt(RES+i,X+2*i,X+2*i+1) for i in range(4)]
            L+=st2(RES,s(SO,4) if final else WSS,sO," sc1" if stage==2 else "")
            if not final:
                L+=unpack(X,RES)+ln(T+4)+st2(T+4,WSS,sN," sc1")+["s_waitcnt vmcnt(0)"]+flag(sF)
            E(f"s_branch {lab('top')}")
        body=finalize(L); A("\n".join(body)); errs+=check(body,"red")
        A.label(lab("done")); A("s_waitcnt vmcnt(0)"); stamp(A,opt,1); A("s_branch L_end")
    return errs
```

```python
from gen_common import *
from gen_rec import mf32, mf16, cvt, mov
WSS=s(S_WS,4)
vL16,vF,vKM,vL8,vVF,vOS,NI,vF4=1,2,3,4,5,6,7,12
ON=8; KF=16; QF=48; VF=80; KM=112; VM=128; SX=136; SM=152; MX=160; PX=164; PC=172; OA=180; OS=244; PK=16
MSK=16; sS=15; sKV=48; sKV2=49; sFQ=50; sFM=51; sM=52; sO=53; sO2=54; sFO=55; sC=56
def s2(A,opt):
    L=[]; E=L.append; h=s(S_R); w=s(S_W)
    E("v_and_b32 v20, 15, v0"); E("v_lshrrev_b32 v21, 4, v0")
    E(f"v_lshlrev_b32 {v(vL16)}, 4, v0"); E(f"v_lshlrev_b32 {v(vL8)}, 3, v0"); E("v_and_b32 v22, 3, v0"); E(f"v_lshlrev_b32 {v(vF4)}, 2, v22")
    E("v_lshrrev_b32 v22, 2, v20"); E("v_and_b32 v23, 1, v20"); E("v_lshl_add_u32 v22, v22, 1, v23"); E("v_lshlrev_b32 v22, 6, v22"); E(f"v_lshl_add_u32 {v(vKM)}, v21, 4, v22")
    E("v_lshlrev_b32 v22, 9, v21"); E(f"v_lshl_add_u32 {v(vVF)}, v20, 5, v22"); E(f"v_lshl_add_u32 {v(vOS)}, v20, 4, v22")
    E("v_and_b32 v22, 1, v21"); E("v_lshlrev_b32 v22, 4, v22"); E("v_lshrrev_b32 v23, 1, v21"); E("v_lshl_add_u32 v22, v23, 2, v22")
    for qt in range(2):
        for a in range(2):
            for r in range(4):
                E(f"v_add_u32 v23, {8*a+r-16*qt}, v22"); E(f"v_cmp_le_i32 {s(MSK+16*qt+2*(4*a+r),2)}, v23, v20")
    E(mov(NI,"0xff800000")); L+=[mov(ON+i,"0x3f803f80") for i in range(4)]+[mov(PC+4*q+j,0) for q in range(2) for j in (1,2)]
    E(f"s_mov_b32 {s(sC)}, 0x3e0293ee")
    E(f"s_lshr_b32 s67, {w}, 1"); E(f"s_and_b32 {s(sS)}, {w}, 1"); E("s_lshl_b32 s68, s67, 6"); E(f"s_add_u32 s68, s68, {s(sS)}"); E("s_lshl_b32 s68, s68, 5"); E(f"s_add_u32 s68, s68, {h}")
    E(f"s_mul_i32 {s(sKV)}, s68, 24576"); E(f"s_add_u32 {s(sKV)}, {s(sKV)}, {QKV}")
    E(f"s_lshl_b32 {s(sM)}, s68, 12"); E(f"s_add_u32 {s(sM)}, {s(sM)}, {KVM}")
    E("s_lshl_b32 s69, s68, 5"); E(f"s_add_u32 {s(sFM)}, s69, {FM}"); E(f"s_add_u32 {s(sFO)}, s69, {FO}")
    E(f"s_lshl_b32 s69, {s(sS)}, 5"); E(f"s_add_u32 s69, s69, {h}"); E(f"s_lshl_b32 {s(sO)}, s69, 13"); E(f"s_add_u32 {s(sO)}, {s(sO)}, {OB}")
    E("s_lshl_b32 s67, s67, 5"); E(f"s_add_u32 s67, s67, {h}"); E("s_lshl_b32 s67, s67, 6"); E(f"s_add_u32 s67, s67, {s(sS)}"); E(f"s_lshl_b32 {s(sFQ)}, s67, 4")
    A("\n".join(finalize(L))); wait_go(A); stamp(A,opt,0)
    if opt.get("s2only0"): A(f"s_cmp_ge_u32 {w}, 2"); A("s_cbranch_scc1 L_end")
    def poll(name,addr,so):
        return [f"L_s2_{name}:", f"s_sub_u32 {s(S_TMO)}, {s(S_TMO)}, 1", "s_cbranch_scc1 L_abort",
                f"buffer_load_dword {v(vF)}, {addr}, {WSS}, {s(so)}{' offen' if addr!='off' else ''} sc1", "s_waitcnt vmcnt(0)",
                f"v_cmp_ne_u32 vcc, 0, {v(vF)}", "s_nop 0", "s_cmp_eq_u64 vcc, exec", f"s_cbranch_scc0 L_s2_{name}"]
    ld=lambda d,n,ad,so,off: f"buffer_load_dwordx{n} {v(d,n)}, {v(ad)}, {WSS}, {s(so)} offen offset:{off} sc1"
    L=["L_s2_top:"]+poll("pq",v(vF4),sFQ); E=L.append
    def adv(k): return f"s_add_u32 {s(sKV2)}, {s(sKV)}, {k}"
    for a in range(2):
        E(adv(4096*a)); L+=[ld(KF+8*k+4*a,4,vL16,sKV2,1024*k) for k in range(4)]
    for q in range(2):
        E(adv(16384+4096*q)); L+=[ld(QF+16*q+4*k,4,vL16,sKV2,1024*k) for k in range(4)]
    for b in range(2):
        E(adv(8192+4096*b)); L+=[ld(VF+16*b+4*n,4,vVF,sKV2,2048*(n//2)+16*(n%2)) for n in range(4)]
    L+=[mf32(SX+8*q+4*a,KF+8*k+4*a,QF+16*q+4*k,0 if k==0 else SX+8*q+4*a) for k in range(4) for q in range(2) for a in range(2)]
    for q in range(2):
        b=SX+8*q; m=MX+2*q
        L+=[f"v_cndmask_b32 {v(b+i)}, {v(NI)}, {v(b+i)}, {s(MSK+16*q+2*i,2)}" for i in range(8)]
        L+=[f"v_max3_f32 {v(m)}, {v(b)}, {v(b+1)}, {v(b+2)}", f"v_max3_f32 {v(m)}, {v(m)}, {v(b+3)}, {v(b+4)}", f"v_max3_f32 {v(m)}, {v(m)}, {v(b+5)}, {v(b+6)}", f"v_max_f32 {v(m)}, {v(m)}, {v(b+7)}"]
    L+=poll("pm","off",sFM)+tl(opt,0,sS,252)
    L+=[ld(KM+4*k,4,vKM,sM,1024*k) for k in range(4)]+[ld(VM+2*k,2,vL8,sM,1024*k+512) for k in range(4)]
    L+=[mf32(SM+4*q,KM+4*k,QF+16*q+4*k,0 if k==0 else SM+4*q) for k in range(4) for q in range(2)]
    Q=range(2); m=lambda q:MX+2*q; t=lambda q:MX+2*q+1
    L+=[f"v_max3_f32 {v(m(q))}, {v(m(q))}, {v(SM+4*q)}, {v(SM+4*q+1)}" for q in Q]
    for sw in ("32","16"):
        L+=[f"v_mov_b32 {v(t(q))}, {v(m(q))}" for q in Q]+[f"v_permlane{sw}_swap_b32 {v(m(q))}, {v(t(q))}" for q in Q]+[f"v_max_f32 {v(m(q))}, {v(m(q))}, {v(t(q))}" for q in Q]
    L+=[f"v_mul_f32 {v(t(q))}, {s(sC)}, {v(m(q))}" for q in Q]
    def soft(q):
        vals=[SX+8*q+i for i in range(8)]+[SM+4*q,SM+4*q+1]
        return [f"v_fma_f32 {v(r)}, {v(r)}, {s(sC)}, -{v(t(q))}" for r in vals]+[f"v_exp_f32 {v(r)}, {v(r)}" for r in vals]+\
               [cvt(PX+4*q+i,SX+8*q+2*i,SX+8*q+2*i+1) for i in range(4)]+[cvt(PC+4*q,SM+4*q,SM+4*q+1),cvt(PC+4*q+3,SM+4*q,SM+4*q+1)]
    def pv(q): return [mf32(OS+4*q,ON,PX+4*q,0)]+[mf32(OA+32*q+4*n,VF+4*n,PX+4*q,0) for n in range(8)]+[mf16(OS+4*q,ON,PC+4*q,OS+4*q)]+[mf16(OA+32*q+4*n,VM+2*(n//2),PC+4*q+2*(n%2),OA+32*q+4*n) for n in range(8)]
    def fin(q):
        o=[f"v_rcp_f32 {v(OS+4*q)}, {v(OS+4*q)}"]
        for b in range(4):
            r0=OA+32*q+8*b; d=PK+16*q+4*b
            o+=[f"v_mul_f32 {v(r)}, {v(r)}, {v(OS+4*q)}" for r in range(r0,r0+8)]+[cvt(d+r,r0+r,r0+4+r) for r in range(4)]
            o.append(f"buffer_store_dwordx4 {v(d,4)}, {v(vOS)}, {WSS}, {s(sO2 if b>=2 else sO)} offen offset:{2048*(b%2)+256*q} sc1")
        return o
    def mix(mm,ff,per=2):
        o=[]; ff=list(ff)
        for x in mm: o.append(x); o+=ff[:per]; ff=ff[per:]
        return o+ff
    E(f"s_add_u32 {s(sO2)}, {s(sO)}, 4096")
    L+=soft(0)+mix(pv(0),soft(1))+mix(pv(1),fin(0))+fin(1)
    L+=["s_waitcnt vmcnt(0)", "s_mov_b64 exec, 1", f"buffer_store_dword {v(ON)}, off, {WSS}, {s(sFO)} sc1", "s_mov_b64 exec, -1"]
    L+=tl(opt,1,sS,252)
    L+=[f"s_add_u32 {s(sKV)}, {s(sKV)}, {2*786432}", f"s_add_u32 {s(sM)}, {s(sM)}, {2*131072}", f"s_add_u32 {s(sFM)}, {s(sFM)}, 2048", f"s_add_u32 {s(sFO)}, {s(sFO)}, 2048",
        f"s_add_u32 {s(sO)}, {s(sO)}, {2*262144}", f"s_add_u32 {s(sFQ)}, {s(sFQ)}, 32", f"s_add_u32 {s(sS)}, {s(sS)}, 2", f"s_cmp_lt_u32 {s(sS)}, 64", "s_cbranch_scc1 L_s2_top"]
    body=align8(finalize(L)); A(".p2align 3"); A("\n".join(body)); stamp(A,opt,1); A("s_branch L_end")
    return check(body+body,"s2")
```

```python
import numpy as np
FQ=0x0; FP3=0x10000; FP5=0x18000; FN=0x20000; FH=0x80000; FO=0xA0000; FM=0xC0000
PR=0x100000; MEMR=0x1E00000; STAMP=0x1F00000; PROF=0x1F10000
XN=0x200000; XR=0xA00000; HB=0x1000000; OB=0x2000000; KVM=0x3000000; QKV=0x4000000; P3=0xA000000; P5=0xE000000
WS=0x10000000
SENT=0x7F817F81
OOB=0x20000000
def fq_off(l,h,s): return FQ+((l*32+h)*64+s)*16
def qkv_off(l,s,h): return QKV+((l*64+s)*32+h)*24576
def o_off(l,s,h): return OB+(s*32+h)*8192
def kvm_off(l,s,h): return KVM+((l*64+s)*32+h)*4096
def kmap():
    tok=np.zeros(4096,int); dh=np.zeros(4096,int)
    for a in range(2):
      for kap in range(4):
        for g in range(4):
          for row in range(16):
            gg,r=row//4,row%4
            T=16*(gg%2)+8*a+4*(gg//2)+r
            for e in range(8):
                p=(((a*4+kap)*64)+16*g+row)*8+e; tok[p]=T; dh[p]=32*kap+8*g+e
    return tok,dh
def qmap():
    tok=np.zeros(4096,int); dh=np.zeros(4096,int)
    for qt in range(2):
      for kap in range(4):
        for g in range(4):
          for c in range(16):
            for e in range(8):
                p=(((qt*4+kap)*64)+16*g+c)*8+e; tok[p]=16*qt+c; dh[p]=32*kap+8*g+e
    return tok,dh
def vmap():
    tok=np.zeros(4096,int); dh=np.zeros(4096,int)
    for w in range(4):
      for g in range(4):
        for cB in range(32):
          for e in range(8):
            p=((w*4+g)*32+cB)*8+e; tok[p]=16*(g%2)+8*(e//4)+4*(g//2)+e%4; dh[p]=32*w+cB
    return tok,dh
def omap():
    tok=np.zeros(4096,int); dh=np.zeros(4096,int)
    for ks in range(8):
      for hi in range(2):
        for T in range(32):
          for e in range(8):
            p=((ks*64)+32*hi+T)*8+e; tok[p]=T; dh[p]=16*ks+8*hi+e
    return tok,dh
def memcol(t,g,hi,e): return 128*(t//2)+32*g+16*hi+8*(e//4)+4*(t%2)+e%4
def memmap():
    row=np.zeros(4096,int); col=np.zeros(4096,int)
    for t in range(8):
      for g in range(4):
        for i in range(16):
          for e in range(8):
            p=(t*64+16*g+i)*8+e; row[p]=2*(i//4)+i%2; col[p]=memcol(t,g,(i%4)//2,e)
    return row,col
```

```python
import sys
from gen_common import *
import gen_rec, gen_dense, gen_s2, gen_red
def build(opt):
    A=Asm(); errs=[]
    startup(A,opt)
    roles=opt.get("roles",{"rec1","rec2","s1","s2","s3","s4","s5","red"})
    X=s(S_XCC); K=s(S_RANK); r=s(S_R); l=s(S_L)
    go=lambda role,lab: A(f"s_cbranch_scc1 {lab if role in roles else 'L_idle'}")
    A(f"s_mov_b32 {r}, {K}"); A(f"s_lshr_b32 {l}, {X}, 2")
    A(f"s_cmp_eq_u32 {X}, 0"); go("rec1","L_rec"); A(f"s_cmp_eq_u32 {X}, 4"); go("rec2","L_rec")
    A(f"s_cmp_eq_u32 {X}, 2"); A("s_cbranch_scc1 L_cl"); A(f"s_cmp_eq_u32 {X}, 7"); A("s_cbranch_scc1 L_cl")
    A(f"s_cmp_eq_u32 {X}, 3"); A("s_cbranch_scc1 L_x3")
    A(f"s_sub_u32 s67, {X}, 4"); A(f"s_cmp_eq_u32 {X}, 1"); A("s_cselect_b32 s67, 0, s67"); A("s_lshl_b32 s67, s67, 5"); A(f"s_add_u32 s67, s67, {K}")
    A(f"s_mul_i32 {r}, s67, 171"); A(f"s_lshr_b32 {r}, {r}, 9"); A(f"s_mul_i32 s68, {r}, 3"); A(f"s_sub_u32 {l}, s67, s68")
    A(f"s_cmp_eq_u32 {l}, 2"); go("s2","L_s2"); A("s_cmp_eq_u32 0, 0"); go("s1","L_s1")
    A.label("L_x3"); A(f"s_lshr_b32 {l}, {K}, 4"); A(f"s_and_b32 {r}, {K}, 15"); A(f"s_cmp_ge_u32 {r}, 14"); A("s_cbranch_scc1 L_idle")
    if opt.get("only")is not None: A(f"s_cmp_lg_u32 {l}, {opt['only']}"); A("s_cbranch_scc1 L_idle")
    A("s_cmp_eq_u32 0, 0"); go("s4","L_s4")
    A.label("L_cl")
    if opt.get("only")is not None: A(f"s_cmp_lg_u32 {l}, {opt['only']}"); A("s_cbranch_scc1 L_idle")
    A(f"s_cmp_lt_u32 {K}, 16"); go("s3","L_s3"); A(f"s_and_b32 {r}, {K}, 7"); A(f"s_cmp_lt_u32 {K}, 24"); go("s5","L_s5"); A("s_cmp_eq_u32 0, 0"); go("red","L_red")
    A.label("L_idle"); arrive(A); A("s_branch L_end")
    A.label("L_abort")
    A("s_mov_b64 exec, 1"); A("v_mov_b32 v100, 36"); A("v_mov_b32 v101, 1"); A(f"global_atomic_add v100, v101, {s(S_DBG,2)} sc1")
    A.label("L_end"); A("s_endpgm")
    if "rec1" in roles or "rec2" in roles: A.label("L_rec"); errs+=gen_rec.rec(A,opt)
    for R in ("s1","s3","s4","s5"):
        if R in roles: A.label("L_"+R); errs+=gen_dense.dense(A,opt,R)
    if "s2" in roles: A.label("L_s2"); errs+=gen_s2.s2(A,opt)
    if "red" in roles: A.label("L_red"); errs+=gen_red.red(A,opt)
    head=open("interleave_layers__memory_aug_recurrent_mem_tr__glu_gated_glu__prompt.s.ref").read().split("; Override launch")[0]
    txt=head+"; @launch grid=(256,1,1) block=(256,1,1) lds=163840\n"
    txt+=f'.amdgcn_target "amdgcn-amd-amdhsa--gfx950"\n.text\n.globl {NAME}\n.p2align 8\n.type {NAME},@function\n{NAME}:\n'
    txt+=A.text()
    txt+=f""".section .rodata,"a"
.p2align 6
.amdhsa_kernel {NAME}
  .amdhsa_next_free_vgpr 512
  .amdhsa_next_free_sgpr 102
  .amdhsa_accum_offset 256
  .amdhsa_group_segment_fixed_size 0
  .amdhsa_kernarg_size 112
  .amdhsa_user_sgpr_count 2
  .amdhsa_user_sgpr_kernarg_segment_ptr 1
  .amdhsa_system_sgpr_workgroup_id_x 1
  .amdhsa_float_denorm_mode_32 3
.end_amdhsa_kernel
"""
    return txt,errs
if __name__=="__main__":
    txt,errs=build(eval(sys.argv[1]) if len(sys.argv)>1 else {})
    for e in errs: print(e)
    open("k.s","w").write(txt)
```

```python
from asmlib import *
from layout import *
NAME="interleave_layers__memory_aug_recurrent_mem_tr__glu_gated_glu__prompt_kernel"
KA=dict(x=0,mem0=8,Wq=16,Wk=24,Wv=32,Wo=40,Wg=64,Wu=72,Wd=80,out=88,dbg=96,ws=104)
TMO=1<<21
S_WS=4
S_T=8
S_L=12; S_R=13; S_W=14
S_DBG=62
S_XCC=64; S_RANK=65; S_TMO=66; S_TMP=67
def srd(A, key, nbytes, base=S_T):
    A(f"s_load_dwordx2 {s(base,2)}, s[0:1], {KA[key]}")
    A(f"s_mov_b32 {s(base+2)}, {nbytes}"); A(f"s_mov_b32 {s(base+3)}, 0x20000")
    A("s_waitcnt lgkmcnt(0)")
def tmo(A):
    A(f"s_sub_u32 {s(S_TMO)}, {s(S_TMO)}, 1"); A("s_cbranch_scc1 L_abort")
def arrive(A):
    l=A.new("L_arr")
    A("s_waitcnt vmcnt(0)"); A("s_barrier")
    A(f"s_cmp_lg_u32 {s(S_W)}, 0"); A(f"s_cbranch_scc1 {l}")
    A("s_mov_b64 exec, 1"); A("v_mov_b32 v100, 32"); A("v_mov_b32 v101, 1")
    A(f"global_atomic_add v100, v101, {s(S_DBG,2)} sc1")
    A("s_mov_b64 exec, -1"); A.label(l)
def wait_go(A):
    l=A.new("L_go")
    A("v_mov_b32 v100, 32")
    A.label(l); tmo(A)
    A(f"global_load_dword v101, v100, {s(S_DBG,2)} sc1"); A("s_waitcnt vmcnt(0)")
    A(f"v_readfirstlane_b32 {s(S_TMP)}, v101"); A("s_nop 3")
    A(f"s_cmp_lt_u32 {s(S_TMP)}, 256"); A(f"s_cbranch_scc1 {l}")
def stamp(A, opt, slot):
    if not opt.get("stamp"): return
    l=A.new("L_st")
    A(f"s_cmp_lg_u32 {s(S_W)}, 0"); A(f"s_cbranch_scc1 {l}")
    A("s_memrealtime s[68:69]"); A("s_memtime s[70:71]"); A("s_waitcnt lgkmcnt(0)")
    A(f"s_lshl_b32 s69, {s(S_XCC)}, 5"); A(f"s_add_u32 s69, s69, {s(S_RANK)}"); A("s_lshl_b32 s69, s69, 6")
    A(f"s_add_u32 s69, s69, {STAMP+slot*8}")
    A("s_mov_b64 exec, 1"); A("v_accvgpr_read_b32 v15, a0") if False else None
    A("v_mov_b32 v46, s68"); A("v_mov_b32 v47, s70")
    A(f"buffer_store_dwordx2 v[46:47], off, {s(S_WS,4)}, s69"); A("s_waitcnt vmcnt(0)")
    A("s_mov_b64 exec, -1"); A.label(l)
def startup(A, opt):
    A("s_cmp_ge_u32 s2, 256"); A("s_cbranch_scc1 L_end")
    A(f"s_load_dwordx2 {s(S_WS,2)}, s[0:1], {KA['ws']}"); A(f"s_load_dwordx2 {s(S_DBG,2)}, s[0:1], {KA['dbg']}")
    A(f"s_getreg_b32 {s(S_XCC)}, hwreg(HW_REG_XCC_ID, 0, 3)")
    A(f"s_mov_b32 {s(S_WS+2)}, {WS}"); A(f"s_mov_b32 {s(S_WS+3)}, 0x20000")
    A(f"s_mov_b32 {s(S_TMO)}, {opt.get('tmo',TMO)}")
    A("v_lshrrev_b32 v1, 6, v0"); A("v_lshlrev_b32 v2, 4, v0"); A(f"v_readfirstlane_b32 {s(S_W)}, v1")
    A("v_mov_b64 v[8:9], 0"); A("v_mov_b64 v[10:11], 0"); A("v_mov_b32 v3, 0"); A("s_lshl_b32 s3, s2, 12")
    A("s_waitcnt lgkmcnt(0)")
    A(f"s_cmp_lg_u32 {s(S_W)}, 0"); A("s_cbranch_scc1 L_norank")
    A("s_mov_b64 exec, 1")
    A(f"s_lshl_b32 {s(S_TMP)}, {s(S_XCC)}, 2"); A(f"v_mov_b32 v4, {s(S_TMP)}"); A("v_mov_b32 v5, 1")
    A(f"global_atomic_add v5, v4, v5, {s(S_DBG,2)} sc0 sc1"); A("s_waitcnt vmcnt(0)")
    A("ds_write_b32 v3, v5"); A("s_mov_b64 exec, -1")
    A.label("L_norank")
    if opt.get("clear",True): A(f"buffer_store_dwordx4 v[8:11], v2, {s(S_WS,4)}, s3 offen sc1")
    A("s_waitcnt lgkmcnt(0)"); A("s_barrier")
    A("ds_read_b32 v5, v3"); A("v_and_b32 v0, 63, v0"); A("s_waitcnt lgkmcnt(0)")
    A(f"v_readfirstlane_b32 {s(S_RANK)}, v5"); A("s_nop 3"); A("s_barrier")
    A(f"s_cmp_ge_u32 {s(S_RANK)}, 32"); A("s_cbranch_scc1 L_abort")

TLB=0x1F40000
def tl(opt, slot, idx_sgpr, tv, add=0):
    if not opt.get("tl2"): return []
    return ["s_memrealtime s[92:93]", f"s_lshl_b32 s94, {s(S_XCC)}, 5", f"s_add_u32 s94, s94, {s(S_RANK)}", "s_lshl_b32 s94, s94, 2", f"s_add_u32 s94, s94, {s(S_W)}",
            "s_lshl_b32 s94, s94, 6", f"s_add_u32 s94, s94, {s(idx_sgpr)}", "s_lshl_b32 s94, s94, 3", f"s_add_u32 s94, s94, {TLB+4*slot+8*add}", "s_waitcnt lgkmcnt(0)",
            f"v_mov_b32 {v(tv)}, s92", "s_mov_b64 exec, 1", f"buffer_store_dword {v(tv)}, off, {s(S_WS,4)}, s94 ;@TL", "s_mov_b64 exec, -1"]
```

```python
from gen_common import *
WSS=s(S_WS,4)
vFL,vF,vST0,vST1,vST2,vDM,vT=1,2,3,4,5,6,7
vRD=8
vDA=16
AF=24
ACC=48
PK=96
sID=15; sI=16; sA1=17; sA2=18; sA3=19; sB1=20; sB2=21; sSTEP=22; sISS=23; sPEND=24; sSRC=25; sFIN=26; sOUT=27; sFOUT=28
sM0=29; sNSRC=30; sNFIN=31; sNOUT=32; sNFOUT=33; sDS=34; sC0=35; sC1=36; sC2=37; sC3=38; sC4=39; sK0=40; sK1=41
def wreg(tile,ks,NK):
    i=(tile*NK+ks)*4
    return 256+i if i<256 else 128+(i-256)
def mf(d,a,b,first): return f"v_mfma_f32_32x32x16_bf16 {v(d,16)}, {reg(a,4)}, {reg(b,4)}, {0 if first else v(d,16)}"
def cvt(d,a,b): return f"v_cvt_pk_bf16_f32 {v(d)}, {v(a)}, {v(b)}"

def load_weights(A, panels, NK):
    n=len(panels); L=[]; E=L.append
    def issue(p):
        sr,sb,c,rs,vs,_,_,_,nk=panels[p]
        for i in range(nk):
            E(f"s_add_u32 s67, {s(sM0)}, {(p%9)*16384+i*4096}"); E("s_mov_b32 m0, s67")
            E(f"s_add_u32 s68, {s(sb)}, {c+16*i*rs}")
            E(f"buffer_load_dwordx4 {v(vs)}, {s(sr,4)}, s68 offen lds ;@p{p}")
    for p in range(min(8,n)): issue(p)
    for p in range(n):
        E(f"@wait vm=p{p} lg=all"); E("s_barrier")
        if p+8<n: issue(p+8)
        _,_,_,_,_,vt,tile,ks0,nk=panels[p]
        for kk in range(nk):
            for q in range(2):
                off=(p%9)*16384+(16*kk+4*q)*256
                E(f"ds_read_b64_tr_b16 {reg(wreg(tile,ks0+kk,NK)+2*q,2)}, {v(vt+(off>>16))} offset:{off&0xffff}")
    E("@wait lg=all"); E("s_barrier")
    A("\n".join(finalize(L)))

def tr_addr(E, dst, kind):
    E("v_lshrrev_b32 v60, 5, v0"); E("v_bfe_u32 v61, v0, 2, 2"); E("v_lshl_add_u32 v60, v60, 3, v61"); E("v_lshlrev_b32 v60, 8, v60")
    E("v_bfe_u32 v61, v0, 4, 1"); E("v_and_b32 v62, 3, v0"); E("v_lshl_add_u32 v61, v61, 2, v62")
    if kind=="nat": E("v_lshlrev_b32 v62, 3, v61")
    else:
        E("v_and_b32 v63, 1, v61"); E("v_lshrrev_b32 v64, 1, v61")
        if kind=="qk": E("v_lshlrev_b32 v62, 5, v63"); E("v_lshl_add_u32 v62, v64, 3, v62")
        else: E("v_lshrrev_b32 v65, 1, v64"); E("v_and_b32 v64, 1, v64"); E("v_lshlrev_b32 v62, 5, v65"); E("v_lshl_add_u32 v62, v63, 4, v62"); E("v_lshl_add_u32 v62, v64, 3, v62")
    E(f"s_lshl_b32 s67, {s(S_W)}, 6"); E("v_add3_u32 v60, v60, v62, s67")
    E(f"v_mov_b32 {v(dst)}, v60"); E(f"v_add_u32 {v(dst+1)}, 0x10000, v60"); E(f"v_add_u32 {v(dst+2)}, 0x20000, v60")

def nexttask(role):
    L=[f"s_add_u32 {s(sI)}, {s(sI)}, 1", f"s_add_u32 {s(sID)}, {s(sID)}, {s(sSTEP)}",
       f"s_cmp_eq_u32 {s(sI)}, {s(sA1)}", f"s_cselect_b32 {s(sID)}, {s(sB1)}, {s(sID)}", f"s_cselect_b32 {s(sSTEP)}, 1, {s(sSTEP)}",
       f"s_cmp_eq_u32 {s(sI)}, {s(sA2)}", f"s_cselect_b32 {s(sID)}, {s(sB2)}, {s(sID)}", f"s_cselect_b32 {s(sSTEP)}, 2, {s(sSTEP)}"]
    return L+offsets(role)
def offsets(role):
    i=s(sID)
    if role=="s1":
        return [f"s_lshr_b32 s67, {i}, 6", f"s_and_b32 s68, {i}, 63", "s_lshl_b32 s69, s67, 7", "s_add_u32 s69, s69, s68",
                "s_lshl_b32 s70, s69, 15", f"s_add_u32 {s(sNSRC)}, s70, {s(sC0)}", "s_lshl_b32 s70, s69, 10", f"s_add_u32 {s(sNFIN)}, s70, {FN}",
                f"s_mul_i32 s70, {i}, 786432", f"s_add_u32 {s(sNOUT)}, s70, {s(sC1)}",
                "s_lshl_b32 s70, s67, 15", "s_lshl_b32 s68, s68, 4", "s_add_u32 s70, s70, s68", f"s_add_u32 {s(sNFOUT)}, s70, {s(sC2)}"]
    m=dict(s3=(262144,1024,262144,256), s4=(32768,1024,114688,1024), s5=(114688,1024,131072,128))[role]
    L=[]
    for mul,c,d in zip(m,(sC0,sC3,sC1,sC2),(sNSRC,sNFIN,sNOUT,sNFOUT)): L+=[f"s_mul_i32 s70, {i}, {mul}", f"s_add_u32 {s(d)}, s70, {s(c)}"]
    return L
rot=[f"s_mov_b32 {s(a)}, {s(b)}" for a,b in ((sSRC,sNSRC),(sFIN,sNFIN),(sOUT,sNOUT),(sFOUT,sNFOUT))]

def dense(A,opt,role):
    R=role; NK=dict(s1=32,s4=32,s3=64,s5=56)[R]; NT=dict(s1=3,s4=2,s3=1,s5=1)[R]; rm=R in("s1","s4"); ND=NK//4; BUF=32768 if rm else 65536
    sc=" sc1" if rm else ""
    w=s(S_W); r=s(S_R); l=s(S_L)
    L=[]; E=L.append
    arrive(A)
    E(f"s_lshl_b32 {s(sM0)}, {w}, 10")
    E("v_lshrrev_b32 v66, 4, v0"); E("v_and_b32 v67, 15, v0")
    keys=dict(s1=("Wq","Wk","Wv"),s3=("Wo",),s4=("Wg","Wu"),s5=("Wd",))[R]
    size=dict(s1=4194304,s3=4194304,s4=1835008,s5=1835008)[R]; RSW=dict(s1=8192,s3=1024,s4=3584,s5=1024)[R]
    for i,k in enumerate(keys):
        E(f"s_load_dwordx2 {s(80+4*i,2)}, s[0:1], {KA[k]}"); E(f"s_mov_b32 {s(82+4*i)}, {size}"); E(f"s_mov_b32 {s(83+4*i)}, 0x20000")
    E(f"s_lshl_b32 s67, {w}, 2"); E("v_add_u32 v66, s67, v66"); E(f"v_mul_u32_u24 v66, {RSW}, v66")
    E("v_lshl_add_u32 v24, v67, 4, v66")
    if rm: E(f"s_lshl_b32 {s(sK0)}, {r}, 8")
    else: E(f"s_lshr_b32 s67, {r}, 2"); E(f"s_mul_i32 {s(sK0)}, s67, {NK*16*1024}"); E(f"s_and_b32 s68, {r}, 3"); E("s_lshl_b32 s68, s68, 8"); E(f"s_add_u32 {s(sK0)}, {s(sK0)}, s68")
    kinds=dict(s1=("qk","qk","nat"),s3=("nat",),s4=("g","g"),s5=("nat",))[R]
    tr={}
    for k in dict.fromkeys(kinds): tr[k]=28+4*len(tr); tr_addr(E,tr[k],k)
    E("s_waitcnt lgkmcnt(0)")
    A("\n".join(finalize(L))); L=[]; E=L.append
    panels=[]
    for t in range(NT):
        for p in range(NK//4):
            panels.append((80+4*t, sK0, p*64*RSW, RSW, 24, tr[kinds[t]], t, 4*p, 4))
    load_weights(A,panels,NK)
    E("v_and_b32 v60, 31, v0"); E("v_lshrrev_b32 v61, 5, v0")
    if rm:
        E("v_and_b32 v62, 15, v0"); E("v_xor_b32 v62, v62, v61"); E("v_lshlrev_b32 v62, 4, v62"); E("v_lshl_add_u32 v62, v60, 10, v62")
        for b in range(8): E(f"v_xor_b32 {v(vRD+b)}, {32*b}, v62")
        E(f"s_and_b32 s67, {w}, 1"); E("s_lshl_b32 s67, s67, 3"); E("v_xor_b32 v62, s67, v0"); E("v_lshlrev_b32 v62, 4, v62")
        for j in range(8): E(f"v_xor_b32 v63, {16*j}, v62"); E(f"v_add_u32 {v(vDA+j)}, {1024*(j//4*4)}, v63")
        E(f"v_lshlrev_b32 {v(vFL)}, 5, v60"); E(f"s_lshl_b32 {s(sM0)}, {w}, 13")
    else:
        E(f"v_lshlrev_b32 {v(vRD)}, 4, v0")
        for j in range(4): E(f"v_add_u32 {v(vDA+j)}, {16384*j}, {v(vRD)}")
        E(f"s_lshl_b32 {s(sM0)}, {w}, 12")
    E(f"s_mov_b32 {s(sSTEP)}, 1"); E(f"s_mov_b32 {s(sA1)}, 0x1000"); E(f"s_mov_b32 {s(sA2)}, 0x1000"); E(f"s_mov_b32 {s(sA3)}, 64"); E(f"s_lshl_b32 {s(sID)}, {l}, 6")
    E(f"s_mov_b32 {s(sB1)}, 0"); E(f"s_mov_b32 {s(sB2)}, 0")
    E(f"s_lshl_b32 s69, {w}, 2")
    if R=="s1":
        N0=opt.get("N0",10); SS=opt.get("SS",36)
        E(f"s_mov_b32 {s(sID)}, {l}"); E(f"s_mov_b32 {s(sSTEP)}, 2"); E(f"s_mov_b32 {s(sA1)}, {N0}"); E(f"s_cmp_eq_u32 {l}, 0")
        for d,a,b in ((sB1,2*N0,64),(sA2,64-N0,N0+SS),(sB2,65+SS,64+SS),(sA3,64-N0+(64-SS)//2,N0+SS+(64-SS)//2)): E(f"s_mov_b32 s67, {b}"); E(f"s_cselect_b32 {s(d)}, {a}, s67")
        if opt.get("s1only0"): E(f"s_min_u32 {s(sA3)}, {s(sA3)}, {64-N0}"); E(f"s_cmp_eq_u32 {l}, 0"); E(f"s_cselect_b32 {s(sA3)}, {s(sA3)}, {N0}")
        E(f"s_add_u32 {s(sC0)}, {s(sM0)}, {XN}"); E(f"s_mul_i32 {s(sC1)}, {r}, 24576"); E(f"s_add_u32 {s(sC1)}, {s(sC1)}, {QKV}")
        E(f"s_lshl_b32 {s(sC2)}, {r}, 10"); E(f"s_add_u32 {s(sC2)}, {s(sC2)}, s69")
        E(f"s_lshl_b32 s67, {w}, 10"); E("v_lshlrev_b32 v62, 9, v61"); E("v_add_u32 v62, s67, v62")
        E("v_lshrrev_b32 v63, 4, v60"); E("v_and_b32 v64, 15, v60"); E("v_lshl_add_u32 v65, v63, 12, v62"); E("v_lshl_add_u32 v65, v64, 4, v65"); E(f"v_add_u32 {v(vST0)}, 16384, v65")
        E("v_bfe_u32 v64, v60, 3, 1"); E("v_lshl_add_u32 v65, v64, 12, v62"); E("v_bfe_u32 v64, v60, 2, 1"); E("v_lshl_add_u32 v65, v64, 7, v65"); E("v_lshl_add_u32 v65, v63, 6, v65")
        E("v_and_b32 v64, 3, v60"); E(f"v_lshl_add_u32 {v(vST1)}, v64, 4, v65")
        E("v_lshlrev_b32 v62, 1, v62"); E("v_lshl_add_u32 v62, v60, 4, v62"); E(f"v_add_u32 {v(vST2)}, 8192, v62")
    elif R=="s4":
        E(f"s_lshl_b32 s67, {l}, 21"); E(f"s_add_u32 {s(sC0)}, s67, {XN+0x200000}"); E(f"s_add_u32 {s(sC0)}, {s(sC0)}, {s(sM0)}")
        E(f"s_lshl_b32 s67, {l}, 16"); E(f"s_add_u32 {s(sC3)}, s67, {FN+65536}")
        E(f"s_lshl_b32 s67, {r}, 13"); E(f"s_lshl_b32 s68, {w}, 11"); E("s_add_u32 s67, s67, s68"); E(f"s_add_u32 {s(sC1)}, s67, {HB}")
        E(f"s_lshl_b32 s67, {r}, 6"); E("s_add_u32 s67, s67, s69"); E(f"s_add_u32 {s(sC2)}, s67, {FH}")
        E(f"v_lshlrev_b32 {v(vST0)}, 4, v0"); E(f"s_mov_b32 {s(sK0)}, 0xbfb8aa3b")
    else:
        E(f"s_lshr_b32 s70, {r}, 2"); E(f"s_and_b32 s71, {r}, 3")
        if R=="s3":
            E("s_lshl_b32 s67, s70, 16"); E(f"s_add_u32 s67, s67, {s(sM0)}"); E(f"s_lshl_b32 s68, {l}, 24"); E("s_sub_u32 s67, s67, s68"); E(f"s_add_u32 {s(sC0)}, s67, {OB}")
            E("s_lshl_b32 s67, s70, 8"); E(f"s_add_u32 {s(sC3)}, s67, {FO}"); E("v_and_b32 v62, 7, v0"); E(f"v_lshlrev_b32 {v(vFL)}, 5, v62")
        else:
            E("s_mul_i32 s67, s70, 57344"); E(f"s_add_u32 s67, s67, {s(sM0)}"); E(f"s_add_u32 {s(sC0)}, s67, {HB}")
            E(f"s_mul_i32 s67, s70, 448"); E(f"s_add_u32 {s(sC3)}, s67, {FH}"); E("v_min_u32 v62, 27, v0")
            E("v_lshrrev_b32 v63, 2, v62"); E("v_and_b32 v62, 3, v62"); E("v_lshlrev_b32 v63, 6, v63"); E(f"v_lshl_add_u32 {v(vFL)}, v62, 2, v63")
        E("s_lshl_b32 s67, s70, 16"); E("s_lshl_b32 s68, s71, 9"); E("s_add_u32 s67, s67, s68"); E(f"s_lshl_b32 s68, {w}, 7"); E("s_add_u32 s67, s67, s68"); E(f"s_add_u32 {s(sC1)}, s67, {P3 if R=='s3' else P5}")
        E(f"s_lshl_b32 s67, {r}, 4"); E("s_add_u32 s67, s67, s69"); E(f"s_add_u32 {s(sC2)}, s67, {FP3 if R=='s3' else FP5}")
        E("v_lshlrev_b32 v62, 13, v61"); E(f"v_lshl_add_u32 {v(vST0)}, v60, 2, v62")
    if R=="s5": E(f"s_lshl_b32 {s(sK1)}, {w}, 11"); E(f"v_subrev_u32 {v(vDA+3)}, {s(sK1)}, {v(vDA+3)}")
    L+=offsets(R)+rot+[f"s_mov_b32 {s(sI)}, 0"]+nexttask(R)+[f"s_mov_b32 {s(sISS)}, 0", f"s_mov_b32 {s(sPEND)}, {OOB}", f"v_mov_b32 {v(vT)}, 1"]
    A("\n".join(finalize(L)))
    wait_go(A); stamp(A,opt,0)
    def dmas(so,m0reg):
        o=[]
        for j in range(ND):
            c=j//4; g=[]
            if rm: lo=4096*c; ad=vDA+j
            else: lo=16384*c; ad=vDA+c
            if j%4==0:
                g=[f"s_add_u32 s67, {s(m0reg)}, {lo}"]
                if R=="s5" and c==3: g+=[f"s_sub_u32 s67, s67, {s(sK1)}"]
                g+=["s_mov_b32 m0, s67"]
            g.append(f"buffer_load_dwordx4 {v(ad)}, {WSS}, {s(so)} offen offset:{1024*(j%4)} sc1 lds ;@D{c}")
            o.append(g)
        return o
    pub=["s_mov_b64 exec, 1", f"buffer_store_dword {v(vT)}, off, {WSS}, {s(sPEND)}{sc}", "s_mov_b64 exec, -1", f"s_mov_b32 {s(sPEND)}, {OOB}"]
    chk=[f"v_cmp_ne_u32 vcc, 0, {v(vF)}", "s_nop 0", "s_cmp_eq_u64 vcc, exec"]
    NST=dict(s1=6,s4=2,s3=16,s5=16)[R]+(1 if opt.get("tl2") else 0)
    lab=lambda x: f"L_{R}_{x}"
    A.label(lab("top"))
    A(f"s_cmp_lg_u32 {s(sISS)}, 0"); A(f"s_cbranch_scc1 {lab('iss')}")
    A("s_waitcnt vmcnt(0)"); A("\n".join(pub))
    A.label(lab("poll")); tmo(A)
    A(f"buffer_load_dword {v(vF)}, {v(vFL)}, {WSS}, {s(sFIN)} offen sc1"); A("s_waitcnt vmcnt(0)"); A("\n".join(chk)); A(f"s_cbranch_scc0 {lab('poll')}")
    A("\n".join(finalize([x for g in dmas(sSRC,sM0) for x in g]))); A("s_waitcnt vmcnt(0)"); A(f"s_branch {lab('go')}")
    A.label(lab("iss")); A(f"s_waitcnt vmcnt({NST})")
    L=[lab("go")+":", "s_barrier"]; E=L.append
    rd=lambda ks: (f"ds_read_b128 {v(AF+4*(ks%6),4)}, {v(vRD+(ks%8))} offset:{256*(ks//8)}" if rm else f"ds_read_b128 {v(AF+4*(ks%6),4)}, {v(vRD)} offset:{1024*ks}")
    L+=tl(opt,0,sI,127,-1)
    L+=[rd(k) for k in range(5)]
    E(f"buffer_load_dword {v(vF)}, {v(vFL)}, {WSS}, {s(sNFIN)} offen sc1 ;@F")
    E(f"s_xor_b32 {s(sM0)}, {s(sM0)}, {BUF}")
    K1={3:10,2:12,1:20}[NT]; G1=min(1,NT-1); DD=1 if NT>1 else 2
    dm=dmas(sDS,sM0)
    for ks in range(NK):
        x=AF+4*(ks%6); g=[]
        for t in range(NT):
            tr_=(R=="s4") or (R=="s1" and t<2)
            g.append(mf(ACC+16*t,wreg(t,ks,NK),x,ks==0) if tr_ else mf(ACC+16*t,x,wreg(t,ks,NK),ks==0))
        f={0:[rd(ks+5)] if ks+5<NK else []}
        ex=[]
        if ks==K1: ex=["s_waitcnt vmcnt(0)"]+pub+chk[:1]
        if ks==K1+1: ex=[chk[2], f"s_cselect_b32 {s(sISS)}, 1, 0", f"s_cmp_lt_u32 {s(sI)}, {s(sA3)}", f"s_cselect_b32 {s(sISS)}, {s(sISS)}, 1"]
        if ks==K1+2: ex=[f"s_cselect_b32 s68, {s(sNSRC)}, {OOB}", f"s_cmp_lg_u32 {s(sISS)}, 0", f"s_cselect_b32 {s(sDS)}, s68, {OOB}"]
        if ks>=K1+3 and (ks-K1-3)%DD==0 and (ks-K1-3)//DD<ND: ex=dm[(ks-K1-3)//DD]
        f[G1]=f.get(G1,[])+ex
        L+=weave(g,f)
    tog=[f"v_xor_b32 {v(vRD+b)}, {BUF}, {v(vRD+b)}" for b in range(8 if rm else 1)]
    L+=tl(opt,1,sI,127,-1)
    L+=tog+[f"s_mov_b32 {s(sPEND)}, {s(sFOUT)}"]
    st=lambda rg,n,ad,off,so=sOUT: f"buffer_store_dword{'x4' if n==4 else ''} {v(rg,n)}, {v(ad)}, {WSS}, {s(so)} offen offset:{off}{sc}"
    if R=="s1":
        for t in range(3):
            for j in range(2):
                L+=[cvt(PK+8*t+4*j+e,ACC+16*t+8*j+2*e,ACC+16*t+8*j+2*e+1) for e in range(4)]
                E(st(PK+8*t+4*j,4,vST0+t,(512 if t==2 else 256)*j))
    elif R=="s4":
        G=ACC; U=ACC+16
        for j in range(2):
            rr=range(8*j,8*j+8)
            L+=[f"v_mul_f32 {v(G+i)}, {s(sK0)}, {v(G+i)}" for i in rr]+[f"v_exp_f32 {v(G+i)}, {v(G+i)}" for i in rr]+[f"v_add_f32 {v(G+i)}, 1.0, {v(G+i)}" for i in rr]
            L+=[f"v_rcp_f32 {v(G+i)}, {v(G+i)}" for i in rr]+[f"v_pk_mul_f32 {v(G+i,2)}, {v(G+i,2)}, {v(U+i,2)}" for i in rr if i%2==0]
            L+=[cvt(PK+4*j+e,G+8*j+2*e,G+8*j+2*e+1) for e in range(4)]; E(st(PK+4*j,4,vST0,1024*j))
    else:
        E(f"s_mov_b32 s68, {s(sOUT)}")
        for i in range(4):
            for r2 in range(2):
                for r1 in range(2): E(st(ACC+4*i+2*r2+r1,1,vST0,2048*r1,68))
                E(f"s_add_u32 s68, s68, {4096 if r2==0 else 12288}")
    E(f"s_cmp_ge_u32 {s(sI)}, {s(sA3)}"); E(f"s_cbranch_scc1 {lab('done')}")
    L+=rot+nexttask(R); E(f"s_branch {lab('top')}")
    body=finalize(L); body=align8(body) if opt.get("al",1) else body
    A(".p2align 3"); A("\n".join(body))
    A.label(lab("done")); A("s_waitcnt vmcnt(0)"); A("\n".join(pub)); stamp(A,opt,1); A("s_branch L_end")
    return check(body+body,R)
```

```python
from gen_common import *
from gen_rec import cvt
WSS=s(S_WS,4)
vL16,vL8,vFa,vF,vOne=1,2,3,5,7
XB=(8,32); TB=(16,40); RB=(24,48); PB=(64,96); LB=128
sS=15; sROW=17; sP=18; sR=19; sO=20; sN=21; sF=22; sFI=23; sEPS=25; sInv=26
SX=28; SO=32
def zip2(f):
    a,b=f(0),f(1); return [x for p in zip(a,b) for x in p]
def wsum(r,t):
    o=[f"v_add_f32_dpp {v(r)}, {v(r)}, {v(r)} row_ror:{k} row_mask:0xf bank_mask:0xf" for k in (1,2,4,8)]
    for sw in ("16","32"): o+=[f"v_mov_b32 {v(t)}, {v(r)}", f"v_permlane{sw}_swap_b32 {v(r)}, {v(t)}", f"v_add_f32 {v(r)}, {v(r)}, {v(t)}"]
    return o
def unpack(d,src,n=4):
    o=[]
    for i in range(n): o+=[f"v_lshlrev_b32 {v(d+2*i)}, 16, {v(src+i)}", f"v_and_b32 {v(d+2*i+1)}, 0xffff0000, {v(src+i)}"]
    return o
def rnd(r): return [cvt(r,r,r), f"v_lshlrev_b32 {v(r)}, 16, {v(r)}"]
def ln(j):
    X=XB[j]; T=TB[j]; m=T; q=T+1; t=T+2; u=T+3; out=T+4
    pk=lambda op,d,a,b,x="": f"v_pk_{op}_f32 {v(d,2)}, {v(a,2)}, {v(b,2)}{x}"
    o=[pk("add",t,X,X+2), pk("add",out,X+4,X+6), pk("add",t,t,out), f"v_add_f32 {v(m)}, {v(t)}, {v(u)}"]+wsum(m,t)+[f"v_mul_f32 {v(m)}, {s(sInv)}, {v(m)}"]
    D=PB[j]
    o+=[pk("add",D+i,X+i,m," op_sel_hi:[1,0] neg_lo:[0,1] neg_hi:[0,1]") for i in range(0,8,2)]
    o+=[pk("mul",t,D,D)]+[f"v_pk_fma_f32 {v(t,2)}, {v(D+i,2)}, {v(D+i,2)}, {v(t,2)}" for i in (2,4,6)]+[f"v_add_f32 {v(q)}, {v(t)}, {v(u)}"]
    o+=rnd(m)+wsum(q,t)+[f"v_mul_f32 {v(q)}, {s(sInv)}, {v(q)}"]+rnd(q)+[f"v_add_f32 {v(q)}, {s(sEPS)}, {v(q)}"]+rnd(q)+[f"v_sqrt_f32 {v(q)}, {v(q)}"]
    o+=[pk("add",X+i,X+i,m," op_sel_hi:[1,0] neg_lo:[0,1] neg_hi:[0,1]") for i in range(0,8,2)]
    o+=rnd(q)+[f"v_rcp_f32 {v(t)}, {v(q)}"]+[cvt(out+i,X+2*i,X+2*i+1) for i in range(4)]+unpack(X,out)
    o+=[pk("mul",X+i,X+i,t," op_sel_hi:[1,0]") for i in range(0,8,2)]+[cvt(out+i,X+2*i,X+2*i+1) for i in range(4)]
    return o
def st2(r,j,srd,so,sc,tag=""): return [f"buffer_store_dwordx2 {v(r+2*u,2)}, {v(vL8)}, {srd}, {s(so)} offen offset:{512*u+1024*j}{sc}{tag}" for u in range(2)]
def flag(so): return ["s_mov_b64 exec, 3", f"buffer_store_dword {v(vOne)}, {v(4)}, {WSS}, {s(so)} offen sc1", "s_mov_b64 exec, -1"]
def red(A,opt):
    arrive(A)
    L=[]; E=L.append; l=s(S_L)
    for b,k in ((SX,"x"),(SO,"out")): E(f"s_load_dwordx2 {s(b,2)}, s[0:1], {KA[k]}"); E(f"s_mov_b32 {s(b+2)}, 2097152"); E(f"s_mov_b32 {s(b+3)}, 0x20000")
    E(f"v_lshlrev_b32 {v(vL16)}, 4, v0"); E(f"v_lshlrev_b32 {v(vL8)}, 3, v0"); E(f"v_lshlrev_b32 {v(vFa)}, 2, v0"); E("v_lshlrev_b32 v4, 5, v0"); E(f"v_mov_b32 {v(vOne)}, 1")
    E(f"s_and_b32 s67, {s(S_R)}, 3"); E("s_lshl_b32 s67, s67, 2"); E(f"s_add_u32 s67, s67, {s(S_W)}"); E(f"s_lshl_b32 {s(sROW)}, s67, 1")
    E(f"s_mov_b32 {s(sEPS)}, 0x3727c5ac"); E(f"s_mov_b32 {s(sInv)}, 0x3b000000"); E(f"s_mov_b32 {s(sS)}, 0")
    E(f"s_lshr_b32 s68, {s(S_R)}, 2"); E("s_lshl_b32 s67, s68, 1"); E(f"s_add_u32 s67, s67, {l}"); E("s_lshl_b32 s67, s67, 5"); E(f"s_add_u32 s67, s67, {s(sROW)}")
    E(f"s_lshl_b32 {s(sR)}, s67, 10"); E(f"s_add_u32 {s(sN)}, {s(sR)}, {XN}"); E("s_lshl_b32 s67, s67, 5"); E(f"s_add_u32 {s(sF)}, s67, {FN}")
    E("s_waitcnt lgkmcnt(0)")
    for i in range(16):
        L+=[f"buffer_load_dwordx2 {v(LB+8*i+2*u,2)}, {v(vL8)}, {s(SX,4)}, {s(sR)} offen offset:{512*u}" for u in range(4)]; E(f"s_add_u32 {s(sR)}, {s(sR)}, 131072")
        if i==7: E("s_waitcnt vmcnt(16)")
    E("s_waitcnt vmcnt(0)")
    A("\n".join(finalize(L))); wait_go(A); stamp(A,opt,0)
    L=[]; E=L.append
    for i in range(16):
        L+=zip2(lambda j: unpack(XB[j],LB+8*i+4*j)+ln(j))
        if i>=1: E(f"@wait vm=r{i-1}"); L+=flag(sF); E(f"s_add_u32 {s(sF)}, {s(sF)}, 4096")
        L+=st2(TB[0]+4,0,WSS,sN," sc1",f" ;@r{i}")+st2(TB[1]+4,1,WSS,sN," sc1",f" ;@r{i}"); E(f"s_add_u32 {s(sN)}, {s(sN)}, 131072")
    E("@wait vm=all"); L+=flag(sF)
    A("\n".join(finalize(L)))
    errs=[]
    A(f"s_lshr_b32 s67, {s(S_R)}, 2"); A(f"s_lshl_b32 s68, {l}, 1"); A("s_add_u32 s67, s67, s68")
    for k in (1,2,3): A(f"s_cmp_eq_u32 s67, {k}"); A(f"s_cbranch_scc1 L_red{k}_ini")
    for k in range(4):
        ly,st=k//2,(3,5)[k%2]; NP=4 if st==3 else 2
        stage=k+1; final=(stage==4)
        lab=lambda x:f"L_red{k}_{x}"
        A.label(lab("ini"))
        if st==5: A(f"v_and_b32 {v(vFa)}, 127, {v(vFa)}")
        A(f"s_mov_b32 {s(sFI)}, {(FP3+ly*16384) if st==3 else (FP5+ly*8192)}")
        A(f"s_lshl_b32 s67, {s(sROW)}, 11"); A(f"s_add_u32 {s(sP)}, s67, {(P3+ly*(16<<20)) if st==3 else (P5+ly*(8<<20))}")
        if stage==1: rs,ro,rc=s(SX,4),0,""
        else: rs,ro,rc=WSS,XR+(stage-2)*0x200000," sc1"
        A(f"s_lshl_b32 s67, {s(sROW)}, 10"); A(f"s_add_u32 {s(sR)}, s67, {ro}"); A(f"s_add_u32 {s(sO)}, s67, {0 if final else XR+(stage-1)*0x200000}"); A(f"s_add_u32 {s(sN)}, s67, {XN+stage*0x200000}")
        A(f"s_lshl_b32 s67, {s(sROW)}, 5"); A(f"s_add_u32 {s(sF)}, s67, {FN+stage*65536}")
        L=[lab("top")+":"]; E=L.append
        res=[f"buffer_load_dwordx2 {v(RB[j]+2*u,2)}, {v(vL8)}, {rs}, {s(sR)} offen offset:{512*u+1024*j}{rc}" for j in range(2) for u in range(2)]
        if stage==1: L+=res
        L+=[lab("poll")+":", f"s_sub_u32 {s(S_TMO)}, {s(S_TMO)}, 1", "s_cbranch_scc1 L_abort",
            f"buffer_load_dword {v(vF)}, {v(vFa)}, {WSS}, {s(sFI)} offen sc1", "s_waitcnt vmcnt(0)",
            f"v_cmp_ne_u32 vcc, 0, {v(vF)}", f"s_mov_b32 s68, {s(sP)}", "s_cmp_eq_u64 vcc, exec", f"s_cbranch_scc0 {lab('poll')}"]
        for p_ in range(NP):
            L+=[f"buffer_load_dwordx4 {v(PB[j]+8*p_+4*u,4)}, {v(vL16)}, {WSS}, s68 offen offset:{1024*u+2048*j} sc1" for j in range(2) for u in range(2)]
            if p_<NP-1: E("s_add_u32 s68, s68, 65536")
        if stage!=1: L+=res
        for p_ in range(1,NP): L+=zip2(lambda j:[f"v_pk_add_f32 {v(PB[j]+i,2)}, {v(PB[j]+i,2)}, {v(PB[j]+8*p_+i,2)}" for i in range(0,8,2)])
        L+=zip2(lambda j:[cvt(TB[j]+4+i,PB[j]+2*i,PB[j]+2*i+1) for i in range(4)]+unpack(PB[j],TB[j]+4)+unpack(XB[j],RB[j])+
                [f"v_pk_add_f32 {v(XB[j]+i,2)}, {v(XB[j]+i,2)}, {v(PB[j]+i,2)}" for i in range(0,8,2)]+[cvt(RB[j]+i,XB[j]+2*i,XB[j]+2*i+1) for i in range(4)])
        for j in range(2): L+=st2(RB[j],j,s(SO,4) if final else WSS,sO," sc1" if stage==2 else "")
        if not final:
            L+=zip2(lambda j: unpack(XB[j],RB[j])+ln(j))
            for j in range(2): L+=st2(TB[j]+4,j,WSS,sN," sc1")
        L+=[f"s_add_u32 {s(sFI)}, {s(sFI)}, {256 if st==3 else 128}", f"s_add_u32 {s(sP)}, {s(sP)}, {NP*65536}"]+[f"s_add_u32 {s(x)}, {s(x)}, 32768" for x in (sR,sO,sN)]
        if not final: L+=["s_waitcnt vmcnt(0)"]+flag(sF)+[f"s_add_u32 {s(sF)}, {s(sF)}, 1024"]
        L+=tl(opt,0,sS,100)
        L+=[f"s_add_u32 {s(sS)}, {s(sS)}, 1", f"s_cmp_lt_u32 {s(sS)}, 64", f"s_cbranch_scc1 {lab('top')}"]
        body=align8(finalize(L)); A(".p2align 3"); A("\n".join(body)); errs+=check(body+body,"red")
        stamp(A,opt,1); A("s_branch L_end")
    return errs
```

```python
from asmlib import *
from layout import *
NAME="interleave_layers__memory_aug_recurrent_mem_tr__glu_gated_glu__prompt_kernel"
KA=dict(x=0,mem0=8,Wq=16,Wk=24,Wv=32,Wo=40,Wg=64,Wu=72,Wd=80,out=88,dbg=96,ws=104)
TMO=1<<21
S_WS=4
S_T=8
S_L=12; S_R=13; S_W=14
S_DBG=62
S_XCC=64; S_RANK=65; S_TMO=66; S_TMP=67
def srd(A, key, nbytes, base=S_T):
    A(f"s_load_dwordx2 {s(base,2)}, s[0:1], {KA[key]}")
    A(f"s_mov_b32 {s(base+2)}, {nbytes}"); A(f"s_mov_b32 {s(base+3)}, 0x20000")
    A("s_waitcnt lgkmcnt(0)")
def tmo(A):
    A(f"s_sub_u32 {s(S_TMO)}, {s(S_TMO)}, 1"); A("s_cbranch_scc1 L_abort")
S_GRP=3; S_PH=2
def arrive(A):
    l=A.new("L_arr")
    A("s_waitcnt vmcnt(0)"); A("s_barrier")
    A(f"s_cmp_lg_u32 {s(S_W)}, 0"); A(f"s_cbranch_scc1 {l}")
    A(f"s_and_b32 s67, {s(S_GRP)}, 1"); A("s_lshl_b32 s67, s67, 7"); A(f"s_lshr_b32 s68, {s(S_GRP)}, 1"); A("s_lshl_b32 s68, s68, 2"); A("s_add_u32 s67, s67, s68"); A(f"s_add_u32 s67, s67, {s(S_PH)}")
    A(f"s_mul_i32 s68, {s(S_XCC)}, {s(S_XCC)}"); A("s_lshl_b32 s68, s68, 8"); A(f"s_add_u32 s68, s68, {s(S_XCC)}"); A("s_lshl_b32 s68, s68, 8"); A("s_add_u32 s68, s68, 1")
    A("s_mov_b64 exec, 1"); A("v_mov_b32 v100, s67"); A("v_mov_b32 v101, s68")
    A(f"global_atomic_add v100, v101, {s(S_DBG,2)} sc1")
    A("s_mov_b64 exec, -1"); A.label(l)
def clear_flags(A,opt):
    if not opt.get("clear",True): return
    A(f"s_min_u32 s67, {s(S_GRP)}, 5"); A("s_sub_u32 s67, s67, 2"); A("s_lshl_b32 s67, s67, 5"); A(f"s_add_u32 s67, s67, {s(S_RANK)}"); A("s_lshl_b32 s67, s67, 2"); A(f"s_add_u32 s67, s67, {s(S_W)}"); A("s_lshl_b32 s67, s67, 11")
    A("v_lshlrev_b32 v100, 4, v0"); A("v_mov_b64 v[104:105], 0"); A("v_mov_b64 v[106:107], 0")
    for o in (0,1024): A(f"buffer_store_dwordx4 v[104:107], v100, {s(S_WS,4)}, s67 offen offset:{o} sc1")
def wait_trigger(A):
    l=A.new("L_trig")
    A(f"s_lshl_b32 s68, {s(S_RANK)}, 10")
    A.label(l); tmo(A); A("s_sleep 4")
    A(f"buffer_load_dword v101, off, {s(S_WS,4)}, s68 sc1"); A("s_waitcnt vmcnt(0)")
    A(f"v_readfirstlane_b32 {s(S_TMP)}, v101"); A("s_nop 3"); A(f"s_cmp_eq_u32 {s(S_TMP)}, 0"); A(f"s_cbranch_scc1 {l}")
def wait_go(A):
    l=A.new("L_go")
    A("v_mbcnt_lo_u32_b32 v102, -1, 0"); A("v_and_b32 v100, 1, v102"); A("v_lshlrev_b32 v100, 7, v100"); A("v_bfe_u32 v102, v102, 1, 2"); A("v_lshl_add_u32 v100, v102, 2, v100"); A(f"v_add_u32 v100, {s(S_PH)}, v100")
    A.label(l); tmo(A)
    A(f"global_load_dword v101, v100, {s(S_DBG,2)} sc1"); A("s_waitcnt vmcnt(0)")
    A("v_and_b32 v102, 0xff, v101"); A("v_cmp_eq_u32 vcc, 32, v102"); A("v_bfe_u32 v102, v101, 8, 8"); A("v_lshrrev_b32 v103, 16, v101")
    A("s_and_b32 s67, vcc_lo, 0x9d"); A("s_cmp_eq_u32 s67, 0x9d"); A(f"s_cbranch_scc1 {l}_ok"); A("s_sleep 8"); A(f"s_branch {l}"); A.label(l+"_ok")
    A("v_mul_u32_u24 v102, v102, v102"); A("v_lshlrev_b32 v103, 5, v103"); A("v_cmp_eq_u32 vcc, v102, v103"); A("s_nop 3")
    A("s_and_b32 s67, vcc_lo, 0x95"); A("s_cmp_lg_u32 s67, 0x95"); A("s_cbranch_scc1 L_regroup")
def stamp(A, opt, slot):
    if not opt.get("stamp"): return
    l=A.new("L_st")
    A(f"s_cmp_lg_u32 {s(S_W)}, 0"); A(f"s_cbranch_scc1 {l}")
    A("s_memrealtime s[68:69]"); A("s_memtime s[70:71]"); A("s_waitcnt lgkmcnt(0)")
    A(f"s_lshl_b32 s69, {s(S_GRP)}, 5"); A(f"s_add_u32 s69, s69, {s(S_RANK)}"); A("s_lshl_b32 s69, s69, 6")
    A(f"s_add_u32 s69, s69, {STAMP+slot*8}")
    A("s_mov_b64 exec, 1"); A("v_accvgpr_read_b32 v15, a0") if False else None
    A("v_mov_b32 v46, s68"); A("v_mov_b32 v47, s70" if not opt.get("entry") else "v_mov_b32 v47, s100")
    A(f"buffer_store_dwordx2 v[46:47], off, {s(S_WS,4)}, s69"); A("s_waitcnt vmcnt(0)")
    A("s_mov_b64 exec, -1"); A.label(l)
def startup(A, opt):
    if opt.get("stamp"): A("s_memrealtime s[100:101]")
    A("s_cmp_ge_u32 s2, 256"); A("s_cbranch_scc1 L_end")
    A(f"s_load_dwordx2 {s(S_WS,2)}, s[0:1], {KA['ws']}"); A(f"s_load_dwordx2 {s(S_DBG,2)}, s[0:1], {KA['dbg']}")
    A(f"s_getreg_b32 {s(S_XCC)}, hwreg(HW_REG_XCC_ID, 0, 3)")
    A(f"s_mov_b32 {s(S_WS+2)}, {WS}"); A(f"s_mov_b32 {s(S_WS+3)}, 0x20000")
    A(f"s_mov_b32 {s(S_TMO)}, {opt.get('tmo',TMO)}")
    A("v_lshrrev_b32 v1, 6, v0"); A("v_and_b32 v0, 63, v0"); A(f"v_readfirstlane_b32 {s(S_W)}, v1")
    A(f"s_and_b32 {s(S_GRP)}, s2, 7"); A(f"s_lshr_b32 {s(S_RANK)}, s2, 3"); A(f"s_mov_b32 {s(S_PH)}, 0")
    A("s_waitcnt lgkmcnt(0)")
    A.label("L_dispatch")
def regroup(A):
    A.label("L_regroup")
    A(f"s_cmp_lg_u32 {s(S_PH)}, 0"); A("s_cbranch_scc1 L_abort")
    A("s_waitcnt vmcnt(0) lgkmcnt(0)"); A("s_barrier"); A("v_mov_b32 v3, 0")
    A(f"s_cmp_lg_u32 {s(S_W)}, 0"); A("s_cbranch_scc1 L_norank")
    A("s_mov_b64 exec, 1")
    A(f"s_lshl_b32 s67, {s(S_XCC)}, 2"); A("s_add_u32 s67, s67, 32"); A("v_mov_b32 v4, s67"); A("v_mov_b32 v5, 1")
    A(f"global_atomic_add v5, v4, v5, {s(S_DBG,2)} sc0 sc1"); A("s_waitcnt vmcnt(0)")
    A("ds_write_b32 v3, v5"); A("s_mov_b64 exec, -1")
    A.label("L_norank")
    A("s_waitcnt lgkmcnt(0)"); A("s_barrier")
    A("ds_read_b32 v5, v3"); A("v_mbcnt_lo_u32_b32 v0, -1, 0"); A("v_mbcnt_hi_u32_b32 v0, -1, v0"); A("s_waitcnt lgkmcnt(0)")
    A(f"v_readfirstlane_b32 {s(S_RANK)}, v5"); A(f"s_mov_b32 {s(S_GRP)}, {s(S_XCC)}"); A(f"s_mov_b32 {s(S_PH)}, 16"); A("s_nop 3"); A("s_barrier")
    A(f"s_cmp_lt_u32 {s(S_RANK)}, 32"); A("s_cbranch_scc1 L_dispatch")

TLB=0x1F40000
def tl(opt, slot, idx_sgpr, tv, add=0):
    if not opt.get("tl2"): return []
    return ["s_memrealtime s[92:93]", f"s_lshl_b32 s94, {s(S_GRP)}, 5", f"s_add_u32 s94, s94, {s(S_RANK)}", "s_lshl_b32 s94, s94, 2", f"s_add_u32 s94, s94, {s(S_W)}",
            "s_lshl_b32 s94, s94, 6", f"s_add_u32 s94, s94, {s(idx_sgpr)}", "s_lshl_b32 s94, s94, 3", f"s_add_u32 s94, s94, {TLB+4*slot+8*add}", "s_waitcnt lgkmcnt(0)",
            f"v_mov_b32 {v(tv)}, s92", "s_mov_b64 exec, 1", f"buffer_store_dword {v(tv)}, off, {s(S_WS,4)}, s94 ;@TL", "s_mov_b64 exec, -1"]
```

```python
from gen_common import *
WSS=s(S_WS,4)
vFL,vF,vST0,vST1,vST2,vDM,vT=1,2,3,4,5,6,7
vRD=8
vDA=16
AF=24
ACC=48
PK=96
sID=15; sI=16; sA1=17; sA2=18; sA3=19; sB1=20; sB2=21; sSTEP=22; sISS=23; sPEND=24; sSRC=25; sFIN=26; sOUT=27; sFOUT=28
sM0=29; sNSRC=30; sNFIN=31; sNOUT=32; sNFOUT=33; sDS=34; sC0=35; sC1=36; sC2=37; sC3=38; sC4=39; sK0=40; sK1=41; sMODE=42; sOUTp=43; sSTB=44; RING=4
def wreg(tile,ks,NK):
    i=(tile*NK+ks)*4
    return 256+i if i<256 else 128+(i-256)
def mf(d,a,b,first): return f"v_mfma_f32_32x32x16_bf16 {v(d,16)}, {reg(a,4)}, {reg(b,4)}, {0 if first else v(d,16)}"
def cvt(d,a,b): return f"v_cvt_pk_bf16_f32 {v(d)}, {v(a)}, {v(b)}"

def load_weights(A, panels, NK):
    n=len(panels); L=[]; E=L.append
    def issue(p):
        sr,sb,c,rs,vs,_,_,_,nk=panels[p]
        for i in range(nk):
            E(f"s_add_u32 s67, {s(sM0)}, {(p%9)*16384+i*4096}"); E("s_mov_b32 m0, s67")
            E(f"s_add_u32 s68, {s(sb)}, {c+16*i*rs}")
            E(f"buffer_load_dwordx4 {v(vs)}, {s(sr,4)}, s68 offen lds ;@p{p}")
    for p in range(min(8,n)): issue(p)
    for p in range(n):
        E(f"@wait vm=p{p} lg=all"); E("s_barrier")
        if p+8<n: issue(p+8)
        _,_,_,_,_,vt,tile,ks0,nk=panels[p]
        for kk in range(nk):
            for q in range(2):
                off=(p%9)*16384+(16*kk+4*q)*256
                E(f"ds_read_b64_tr_b16 {reg(wreg(tile,ks0+kk,NK)+2*q,2)}, {v(vt+(off>>16))} offset:{off&0xffff}")
    E("@wait lg=all"); E("s_barrier")
    A("\n".join(finalize(L)))

def tr_addr(E, dst, kind):
    E("v_lshrrev_b32 v60, 5, v0"); E("v_bfe_u32 v61, v0, 2, 2"); E("v_lshl_add_u32 v60, v60, 3, v61"); E("v_lshlrev_b32 v60, 8, v60")
    E("v_bfe_u32 v61, v0, 4, 1"); E("v_and_b32 v62, 3, v0"); E("v_lshl_add_u32 v61, v61, 2, v62")
    if kind=="nat": E("v_lshlrev_b32 v62, 3, v61")
    else:
        E("v_and_b32 v63, 1, v61"); E("v_lshrrev_b32 v64, 1, v61")
        if kind=="qk": E("v_lshlrev_b32 v62, 5, v63"); E("v_lshl_add_u32 v62, v64, 3, v62")
        else: E("v_lshrrev_b32 v65, 1, v64"); E("v_and_b32 v64, 1, v64"); E("v_lshlrev_b32 v62, 5, v65"); E("v_lshl_add_u32 v62, v63, 4, v62"); E("v_lshl_add_u32 v62, v64, 3, v62")
    E(f"s_lshl_b32 s67, {s(S_W)}, 6"); E("v_add3_u32 v60, v60, v62, s67")
    E(f"v_mov_b32 {v(dst)}, v60"); E(f"v_add_u32 {v(dst+1)}, 0x10000, v60"); E(f"v_add_u32 {v(dst+2)}, 0x20000, v60")

def nexttask(role):
    L=[f"s_add_u32 {s(sI)}, {s(sI)}, 1", f"s_add_u32 {s(sID)}, {s(sID)}, {s(sSTEP)}",
       f"s_cmp_eq_u32 {s(sI)}, {s(sA1)}", f"s_cselect_b32 {s(sID)}, {s(sB1)}, {s(sID)}", f"s_cselect_b32 {s(sSTEP)}, 1, {s(sSTEP)}",
       f"s_cmp_eq_u32 {s(sI)}, {s(sA2)}", f"s_cselect_b32 {s(sID)}, {s(sB2)}, {s(sID)}", f"s_cselect_b32 {s(sSTEP)}, 2, {s(sSTEP)}"]
    return L+offsets(role)
def offsets(role):
    i=s(sID)
    if role=="s1":
        return [f"s_lshr_b32 s67, {i}, 6", f"s_and_b32 s68, {i}, 63", "s_lshl_b32 s69, s67, 7", "s_add_u32 s69, s69, s68",
                "s_lshl_b32 s70, s69, 15", f"s_add_u32 {s(sNSRC)}, s70, {s(sC0)}", "s_lshl_b32 s70, s69, 10", f"s_add_u32 {s(sNFIN)}, s70, {FN}",
                f"s_mul_i32 s70, {i}, 786432", f"s_add_u32 {s(sNOUT)}, s70, {s(sC1)}",
                "s_lshl_b32 s70, s67, 15", "s_lshl_b32 s68, s68, 4", "s_add_u32 s70, s70, s68", f"s_add_u32 {s(sNFOUT)}, s70, {s(sC2)}"]
    m=dict(s3=(262144,1024,262144,256), s4=(32768,1024,114688,1024), s5=(114688,1024,131072,128))[role]
    L=[]
    for mul,c,d in zip(m,(sC0,sC3,sC1,sC2),(sNSRC,sNFIN,sNOUT,sNFOUT)):
        if d==sNOUT and role!="s4": L+=[f"s_and_b32 s70, {i}, {RING-1}", f"s_mul_i32 s70, s70, {mul}", f"s_add_u32 {s(d)}, s70, {s(c)}"]
        else: L+=[f"s_mul_i32 s70, {i}, {mul}", f"s_add_u32 {s(d)}, s70, {s(c)}"]
    return L
rot=[f"s_mov_b32 {s(a)}, {s(b)}" for a,b in ((sSRC,sNSRC),(sFIN,sNFIN),(sOUT,sNOUT),(sFOUT,sNFOUT))]

def dense(A,opt,role):
    R=role; NK=dict(s1=32,s4=32,s3=64,s5=56)[R]; NT=dict(s1=3,s4=2,s3=1,s5=1)[R]; rm=R in("s1","s4"); ND=NK//4; BUF=32768 if rm else 65536
    sc=" sc1" if rm else ""
    w=s(S_W); r=s(S_R); l=s(S_L)
    L=[]; E=L.append
    if R!="s1":
        arrive(A)
        if opt.get("delay",0): wait_go(A); wait_trigger(A)
    E(f"s_lshl_b32 {s(sM0)}, {w}, 10")
    E("v_lshrrev_b32 v66, 4, v0"); E("v_and_b32 v67, 15, v0")
    keys=dict(s1=("Wq","Wk","Wv"),s3=("Wo",),s4=("Wg","Wu"),s5=("Wd",))[R]
    size=dict(s1=4194304,s3=4194304,s4=1835008,s5=1835008)[R]; RSW=dict(s1=8192,s3=1024,s4=3584,s5=1024)[R]
    for i,k in enumerate(keys):
        E(f"s_load_dwordx2 {s(80+4*i,2)}, s[0:1], {KA[k]}"); E(f"s_mov_b32 {s(82+4*i)}, {size}"); E(f"s_mov_b32 {s(83+4*i)}, 0x20000")
    E(f"s_lshl_b32 s67, {w}, 2"); E("v_add_u32 v66, s67, v66"); E(f"v_mul_u32_u24 v66, {RSW}, v66")
    E("v_lshl_add_u32 v24, v67, 4, v66")
    if rm: E(f"s_lshl_b32 {s(sK0)}, {r}, 8")
    else: E(f"s_lshr_b32 s67, {r}, 2"); E(f"s_mul_i32 {s(sK0)}, s67, {NK*16*1024}"); E(f"s_and_b32 s68, {r}, 3"); E("s_lshl_b32 s68, s68, 8"); E(f"s_add_u32 {s(sK0)}, {s(sK0)}, s68")
    kinds=dict(s1=("qk","qk","nat"),s3=("nat",),s4=("g","g"),s5=("nat",))[R]
    tr={}
    for k in dict.fromkeys(kinds): tr[k]=28+4*len(tr); tr_addr(E,tr[k],k)
    E("s_waitcnt lgkmcnt(0)")
    A("\n".join(finalize(L))); L=[]; E=L.append
    panels=[]
    for t in range(NT):
        for p in range(NK//4):
            panels.append((80+4*t, sK0, p*64*RSW, RSW, 24, tr[kinds[t]], t, 4*p, 4))
    load_weights(A,panels,NK)
    E("v_and_b32 v60, 31, v0"); E("v_lshrrev_b32 v61, 5, v0")
    if rm:
        E("v_and_b32 v62, 15, v0"); E("v_xor_b32 v62, v62, v61"); E("v_lshlrev_b32 v62, 4, v62"); E("v_lshl_add_u32 v62, v60, 8, v62")
        for b in range(8): E(f"v_xor_b32 {v(vRD+b)}, {32*b}, v62")
        E(f"s_and_b32 s67, {w}, 1"); E("s_lshl_b32 s67, s67, 3"); E("v_lshrrev_b32 v63, 4, v0"); E("v_and_b32 v62, 15, v0"); E("v_xor_b32 v62, v62, v63"); E("v_xor_b32 v62, s67, v62")
        E("v_lshlrev_b32 v62, 4, v62"); E(f"v_lshl_add_u32 {v(vDA)}, v63, 10, v62"); E(f"v_xor_b32 v62, 64, {v(vDA)}"); E(f"v_add_u32 {v(vDA+1)}, 4096, v62")
        E(f"v_lshlrev_b32 {v(vFL)}, 5, v60"); E(f"s_lshl_b32 {s(sM0)}, {w}, 11"); E(f"s_lshl_b32 {s(sK1)}, {w}, 13")
    else:
        E(f"v_lshlrev_b32 {v(vRD)}, 4, v0")
        for j in range(4): E(f"v_add_u32 {v(vDA+j)}, {16384*j}, {v(vRD)}")
        E(f"s_lshl_b32 {s(sM0)}, {w}, 12")
    E(f"s_mov_b32 {s(sSTEP)}, 1"); E(f"s_mov_b32 {s(sA1)}, 0x1000"); E(f"s_mov_b32 {s(sA2)}, 0x1000"); E(f"s_mov_b32 {s(sA3)}, 64"); E(f"s_lshl_b32 {s(sID)}, {l}, 6")
    E(f"s_mov_b32 {s(sB1)}, 0"); E(f"s_mov_b32 {s(sB2)}, 0")
    E(f"s_lshl_b32 s69, {w}, 2")
    if R=="s1":
        N0=opt.get("N0",12); SS=opt.get("SS",44)
        E(f"s_mov_b32 {s(sID)}, {l}"); E(f"s_mov_b32 {s(sSTEP)}, 2"); E(f"s_mov_b32 {s(sA1)}, {N0}"); E(f"s_cmp_eq_u32 {l}, 0")
        for d,a,b in ((sB1,2*N0,64),(sA2,64-N0,N0+SS),(sB2,65+SS,64+SS),(sA3,64-N0+(64-SS)//2,N0+SS+(64-SS)//2)): E(f"s_mov_b32 s67, {b}"); E(f"s_cselect_b32 {s(d)}, {a}, s67")
        if opt.get("s1only0"): E(f"s_min_u32 {s(sA3)}, {s(sA3)}, {64-N0}"); E(f"s_cmp_eq_u32 {l}, 0"); E(f"s_cselect_b32 {s(sA3)}, {s(sA3)}, {N0}")
        E(f"s_add_u32 {s(sC0)}, {s(sK1)}, {XN}"); E(f"s_mul_i32 {s(sC1)}, {r}, 24576"); E(f"s_add_u32 {s(sC1)}, {s(sC1)}, {QKV}")
        E(f"s_lshl_b32 {s(sC2)}, {r}, 10"); E(f"s_add_u32 {s(sC2)}, {s(sC2)}, s69")
        E(f"s_lshl_b32 s67, {w}, 10"); E("v_lshlrev_b32 v62, 9, v61"); E("v_add_u32 v62, s67, v62")
        E("v_lshrrev_b32 v63, 4, v60"); E("v_and_b32 v64, 15, v60"); E("v_lshl_add_u32 v65, v63, 12, v62"); E("v_lshl_add_u32 v65, v64, 4, v65"); E(f"v_add_u32 {v(vST0)}, 16384, v65")
        E("v_bfe_u32 v64, v60, 3, 1"); E("v_lshl_add_u32 v65, v64, 12, v62"); E("v_bfe_u32 v64, v60, 2, 1"); E("v_lshl_add_u32 v65, v64, 7, v65"); E("v_lshl_add_u32 v65, v63, 6, v65")
        E("v_and_b32 v64, 3, v60"); E(f"v_lshl_add_u32 {v(vST1)}, v64, 4, v65")
        E("v_lshlrev_b32 v62, 1, v62"); E("v_lshl_add_u32 v62, v60, 4, v62"); E(f"v_add_u32 {v(vST2)}, 8192, v62")
    elif R=="s4":
        E(f"s_lshl_b32 s67, {l}, 21"); E(f"s_add_u32 {s(sC0)}, s67, {XN+0x200000}"); E(f"s_add_u32 {s(sC0)}, {s(sC0)}, {s(sK1)}")
        E(f"s_lshl_b32 s67, {l}, 16"); E(f"s_add_u32 {s(sC3)}, s67, {FN+65536}")
        E(f"s_lshl_b32 s67, {r}, 13"); E(f"s_lshl_b32 s68, {w}, 11"); E("s_add_u32 s67, s67, s68"); E(f"s_add_u32 {s(sC1)}, s67, {HB}")
        E(f"s_lshl_b32 s67, {r}, 6"); E("s_add_u32 s67, s67, s69"); E(f"s_add_u32 {s(sC2)}, s67, {FH}")
        E(f"v_lshlrev_b32 {v(vST0)}, 4, v0"); E(f"s_mov_b32 {s(sK0)}, 0xbfb8aa3b")
    else:
        E(f"s_lshr_b32 s70, {r}, 2"); E(f"s_and_b32 s71, {r}, 3")
        if R=="s3":
            E("s_lshl_b32 s67, s70, 16"); E(f"s_add_u32 s67, s67, {s(sM0)}"); E(f"s_lshl_b32 s68, {l}, 24"); E("s_sub_u32 s67, s67, s68"); E(f"s_add_u32 {s(sC0)}, s67, {OB}")
            E("s_lshl_b32 s67, s70, 8"); E(f"s_add_u32 s67, s67, {FO}"); E("v_and_b32 v62, 7, v0"); E(f"v_lshlrev_b32 v62, 5, v62")
        else:
            E("s_mul_i32 s67, s70, 57344"); E(f"s_add_u32 s67, s67, {s(sM0)}"); E(f"s_add_u32 {s(sC0)}, s67, {HB}")
            E(f"s_mul_i32 s67, s70, 448"); E(f"s_add_u32 s67, s67, {FH}"); E("v_min_u32 v62, 27, v0")
            E("v_lshrrev_b32 v63, 2, v62"); E("v_and_b32 v62, 3, v62"); E("v_lshlrev_b32 v63, 6, v63"); E(f"v_lshl_add_u32 v62, v62, 2, v63")
        E("v_add_u32 v62, s67, v62"); E(f"s_lshl_b32 s67, {l}, 16"); E(f"s_add_u32 s67, s67, {FN+(1 if R=='s3' else 2)*65536-RING*1024}"); E("v_lshlrev_b32 v63, 5, v60"); E("v_add_u32 v63, s67, v63")
        E("v_cmp_eq_u32 vcc, 0, v61"); E(f"v_cndmask_b32 {v(vFL)}, v63, v62, vcc"); E(f"s_mov_b32 {s(sC3)}, 0")
        E("s_lshl_b32 s67, s70, 16"); E("s_lshl_b32 s68, s71, 9"); E("s_add_u32 s67, s67, s68"); E(f"s_lshl_b32 s68, {w}, 7"); E("s_add_u32 s67, s67, s68"); E(f"s_lshl_b32 s68, {l}, 21"); E("s_add_u32 s67, s67, s68"); E(f"s_add_u32 {s(sC1)}, s67, {P3 if R=='s3' else P5}")
        E(f"s_lshl_b32 s67, {r}, 4"); E("s_add_u32 s67, s67, s69"); E(f"s_add_u32 {s(sC2)}, s67, {FP3 if R=='s3' else FP5}")
        E("v_lshlrev_b32 v62, 13, v61"); E(f"v_lshl_add_u32 {v(vST0)}, v60, 2, v62")
    if R=="s5": E(f"s_lshl_b32 {s(sK1)}, {w}, 11"); E(f"v_subrev_u32 {v(vDA+3)}, {s(sK1)}, {v(vDA+3)}")
    L+=offsets(R)+rot+[f"s_mov_b32 {s(sI)}, 0", f"s_mov_b32 {s(sOUTp)}, {OOB}"]+[f"s_mov_b32 {s(sISS)}, 0", f"s_mov_b32 {s(sPEND)}, {OOB}", f"v_mov_b32 {v(vT)}, 1", f"v_mov_b32 {v(vF)}, 0"]
    A("\n".join(finalize(L)))
    wait_go(A); stamp(A,opt,0)
    CH=[2,2,2,2] if rm else ([4,4,4,4] if R=="s3" else [4,4,4,2]); KC=8 if rm else 16
    def dmas(so,m0reg):
        o=[]
        for c,n in enumerate(CH):
            for j in range(n):
                g=[]
                if rm: g=[f"s_add_u32 m0, {s(m0reg)}, {c*(8192-256)+1024*j}", "s_nop 0"]; ad=vDA+j; off=256*c
                else:
                    ad=vDA+c; off=1024*j
                    if j==0: g=[f"s_add_u32 m0, {s(m0reg)}, {16384*c}"]+([f"s_sub_u32 m0, m0, {s(sK1)}"] if n==2 else [])+["s_nop 0"]
                o.append(g+[f"buffer_load_dwordx4 {v(ad)}, {WSS}, {s(so)} offen offset:{off} sc1 lds"])
        return o
    pub=["s_mov_b64 exec, 1", f"buffer_store_dword {v(vT)}, off, {WSS}, {s(sPEND)}{sc}", "s_mov_b64 exec, -1", f"s_mov_b32 {s(sPEND)}, {OOB}"]
    def chk(first):
        o=[f"v_cmp_ne_u32 vcc, 0, {v(vF)}"]
        if not rm: o+=[f"s_cmp_lt_u32 {s(sI)}, {first}", "s_cselect_b32 s68, -1, 0", "s_or_b32 vcc_hi, vcc_hi, s68"]
        else: o+=["s_nop 0"]
        return o+["s_cmp_eq_u64 vcc, exec"]
    TLN=1 if opt.get("tl2") else 0
    NST=dict(s1=6,s4=2,s3=16,s5=16)[R]+TLN
    K1=opt.get('K1',{}).get(R,dict(s1=20,s4=16,s3=28,s5=28)[R]); DD=1 if rm else 2; G1=min(1,NT-1); KF=K1-{3:7,2:10,1:15}[NT]; K2=NK-dict(s1=4,s4=2,s3=12,s5=10)[R]; KP=opt.get('KP',{}).get(R,dict(s1=-5,s4=-5,s3=20,s5=20)[R])
    chunk_of=[c for c,n in enumerate(CH) for _ in range(n)]
    dpos=[min(K1+1+j*DD,NK-1) for j in range(ND)]
    DEF=(R=="s1")
    ops=sorted([(-1,"x")]*TLN+[(KF,"x"),(K1,"x")]+([(3+j,"x") for j in range(6)] if DEF else []))
    for ks in range(K1+1,NK): ops+=[(ks,chunk_of[j]) for j in range(ND) if dpos[j]==ks]+([(ks,"x")] if ks==K2 else [])
    ops+=[(NK,"x")]*(TLN if DEF else NST)
    def cnt(c,ks,mode):
        now=sum(1 for k,_ in ops if k<ks)
        if mode==0: return sum(CH[c+1:])+1+now
        last=max(i for i,(k,x) in enumerate(ops) if x==c); return len(ops)-1-last+now
    lab=lambda x: f"L_{R}_{x}"
    A.label(lab("top"))
    A(f"s_mov_b32 {s(sMODE)}, {s(sISS)}"); A(f"s_cmp_lg_u32 {s(sISS)}, 0"); A(f"s_cbranch_scc1 {lab('iss')}")
    A(f"s_waitcnt vmcnt({NST})"); A("\n".join(chk(RING))); A(f"s_cbranch_scc1 {lab('dma')}")
    A("s_waitcnt vmcnt(0)"); A("\n".join(pub))
    A.label(lab("poll")); tmo(A)
    A(f"buffer_load_dword {v(vF)}, {v(vFL)}, {WSS}, {s(sFIN)} offen sc1"); A("s_waitcnt vmcnt(0)"); A("\n".join(chk(RING))); A(f"s_cbranch_scc0 {lab('poll')}")
    A.label(lab("dma"))
    A("\n".join(x for g in dmas(sSRC,sM0) for x in g)); A(f"s_waitcnt vmcnt({ND})"); A("\n".join(pub)); A(f"s_waitcnt vmcnt({cnt(0,-1,0)})")
    A.label(lab("iss")); A(f"s_waitcnt vmcnt({cnt(0,-1,1)})")
    L=[lab("go")+":", "s_barrier"]; E=L.append
    rd=lambda ks: (f"ds_read_b128 {v(AF+4*(ks%6),4)}, {v(vRD+(ks%8))} offset:{8192*(ks//8)}" if rm else f"ds_read_b128 {v(AF+4*(ks%6),4)}, {v(vRD)} offset:{1024*ks}")
    fl=f"buffer_load_dword {v(vF)}, {v(vFL)}, {WSS}, {s(sNFIN)} offen sc1"
    L+=tl(opt,0,sI,127,0)
    L+=[rd(k) for k in range(5)]
    E(f"s_xor_b32 {s(sM0)}, {s(sM0)}, {BUF}")
    dm=dmas(sDS,sM0)
    st=lambda rg,n,ad,off,so=sOUTp: f"buffer_store_dword{'x4' if n==4 else ''} {v(rg,n)}, {v(ad)}, {WSS}, {s(so)} offen offset:{off}{sc}"
    nt=([f"s_cmp_lg_u32 {s(sMODE)}, 0", f"s_cselect_b32 {s(sSTB)}, {s(sOUTp)}, {OOB}"] if DEF else [])+nexttask(R); per={3:3,2:4,1:3}[NT]
    tog=[f"v_xor_b32 {v(vRD+b)}, {BUF}, {v(vRD+b)}" for b in range(8 if rm else 1)]
    for ks in range(NK):
        x=AF+4*(ks%6); g=[]
        for t in range(NT):
            tr_=(R=="s4") or (R=="s1" and t<2)
            g.append(mf(ACC+16*t,wreg(t,ks,NK),x,ks==0) if tr_ else mf(ACC+16*t,x,wreg(t,ks,NK),ks==0))
        f={0:[rd(ks+5)] if ks+5<NK else []}
        if (ks+5)%KC==0 and ks+5<NK:
            c=(ks+5)//KC; lb=lab(f"c{c}"); assert cnt(c,ks,0)<=cnt(c,ks,1)<=63
            f[0]=[f"s_cmp_lg_u32 {s(sMODE)}, 0", f"s_cbranch_scc1 {lb}", f"s_waitcnt vmcnt({cnt(c,ks,0)})", lb+":", f"s_waitcnt vmcnt({cnt(c,ks,1)})", "s_barrier"]+f[0]
        ex=[]
        if ks==KP: lb=lab("kp"); ex=[f"s_cmp_eq_u32 {s(sMODE)}, 0", f"s_cbranch_scc1 {lb}", f"s_waitcnt vmcnt({sum(1 for k,_ in ops if k<ks)})"]+pub+[lb+":"]
        if ks==KF: ex=ex+[fl]
        if ks==K1: ex=["s_waitcnt vmcnt(0)"]+pub+chk(RING)+[f"s_cselect_b32 {s(sISS)}, 1, 0", f"s_cselect_b32 {s(sDS)}, {s(sNSRC)}, {OOB}", f"s_cmp_lt_u32 {s(sI)}, {s(sA3)}", f"s_cselect_b32 {s(sDS)}, {s(sDS)}, {OOB}"]
        for j in range(ND):
            if dpos[j]==ks: ex=ex+dm[j]
        if ks==K2: ex=ex+[fl]
        if DEF and 3<=ks<9: j=ks-3; ex=ex+[st(PK+4*j,4,vST0+j//2,(512 if j//2==2 else 256)*(j%2),sSTB)]
        if ks>=NK-4: ex=ex+tog[:2]; tog=tog[2:]
        f[G1]=f.get(G1,[])+ex
        for gp in range(NT):
            f[gp]=f.get(gp,[])+nt[:per]; nt=nt[per:]
        assert not nt or ks<(2 if rm else 10)
        L+=weave(g,f)
    L+=tl(opt,1,sI,127,-1)
    L+=[f"s_mov_b32 {s(sPEND)}, {s(sFOUT)}", f"s_mov_b32 {s(sOUTp)}, {s(sOUT)}"]+rot
    if R=="s1":
        L+=[cvt(PK+8*t+e,ACC+16*t+2*e,ACC+16*t+2*e+1) for t in range(3) for e in range(8)]
        L+=[f"s_cmp_lt_u32 {s(sI)}, {s(sA3)}", f"s_cselect_b32 {s(sISS)}, {s(sISS)}, 0", f"s_cmp_lg_u32 {s(sISS)}, 0", f"s_cbranch_scc1 {lab('top')}"]
        L+=[st(PK+4*j,4,vST0+j//2,(512 if j//2==2 else 256)*(j%2)) for j in range(6)]
    elif R=="s4":
        G=ACC; U=ACC+16
        for j in range(2):
            rr=range(8*j,8*j+8)
            L+=[f"v_mul_f32 {v(G+i)}, {s(sK0)}, {v(G+i)}" for i in rr]+[f"v_exp_f32 {v(G+i)}, {v(G+i)}" for i in rr]+[f"v_add_f32 {v(G+i)}, 1.0, {v(G+i)}" for i in rr]
            L+=[f"v_rcp_f32 {v(G+i)}, {v(G+i)}" for i in rr]+[f"v_pk_mul_f32 {v(G+i,2)}, {v(G+i,2)}, {v(U+i,2)}" for i in rr if i%2==0]
            L+=[cvt(PK+4*j+e,G+8*j+2*e,G+8*j+2*e+1) for e in range(4)]; E(st(PK+4*j,4,vST0,1024*j))
    else:
        E(f"s_mov_b32 s68, {s(sOUTp)}")
        for i in range(4):
            for r2 in range(2):
                for r1 in range(2): E(st(ACC+4*i+2*r2+r1,1,vST0,2048*r1,68))
                E(f"s_add_u32 s68, s68, {4096 if r2==0 else 12288}")
    E(f"s_cmp_lt_u32 {s(sI)}, {s(sA3)}"); E(f"s_cbranch_scc1 {lab('top')}")
    for x in opt.get("drop",()): L=[y for y in L if not (x in y and not y.endswith(":"))] if x!="bar" else [L[0],L[1]]+[y for y in L[2:] if y!="s_barrier"]
    body=finalize(L); body=align8(body) if opt.get("al",1) else body
    A(".p2align 3"); A("\n".join(body))
    A.label(lab("done")); A("s_waitcnt vmcnt(0)"); A("\n".join(pub)); stamp(A,opt,1); A("s_branch L_end")
    return check(body+body,R)
```

```python
from gen_common import *
LK=0; LV=8192; LM=16384; LQX=24576; LKX=LQX+2304; LOX=LKX+2304; LDUM=LOX+2304; LWV=32768; RS=288
vL16,vL8,vWV,vQW,vQR,vKR,vOW,vKS,vVR,vPST,vSL,vIDN,vIDX,vLW,vJ,vL4=range(16)
MF=16; AQ=48; AK=56; AV=64; QF=72; RG=88; WO=128
EB=[72,80,88,96,104,112,120]
sS=15; sPW0=16; sPW1=17; sPR=18; sMW=20; sMR=21; sMC=22; sKV=23; sKVv=24; sQ=25; sPF0=26
sOo=28; sFO=29; sFQ=30; sR1=31; sC=32; sM0K=33; sM0V=34; sH256=35; MSK=36; IDM=52; sSN=60; sMB=72; sQo=73; sPFo0=74; sPFo1=75; sFQn=76; sMRp=77; sP0=78; sP1=79; sPRp=19; sFOn=27; sMWp=75; sMCp=73
WSS=s(S_WS,4)
def smf(acc,a,b): return f"v_smfmac_f32_16x16x64_bf16 {v(acc,4)}, {v(a,4)}, {reg(b,8)}, {v(vIDX)}"
def mf32(d,a,b,c): return f"v_mfma_f32_16x16x32_bf16 {v(d,4)}, {v(a,4)}, {v(b,4)}, {c if c==0 else v(c,4)}"
def mf16(d,a,b,c): return f"v_mfma_f32_16x16x16_bf16 {v(d,4)}, {v(a,2)}, {v(b,2)}, {c if c==0 else v(c,4)}"
def dsr(d,addr,off,tag=""): return f"ds_read_b128 {v(d,4)}, {v(addr)} offset:{off}"+(f" ;@{tag}" if tag else "")
def z64(r): return f"v_mov_b64 {v(r,2)}, 0"
def cvt(d,a,b): return f"v_cvt_pk_bf16_f32 {v(d)}, {v(a)}, {v(b)}"
def add(d,a,b): return f"v_add_f32 {v(d)}, {v(a)}, {v(b)}"
def mov(d,x): return f"v_mov_b32 {v(d)}, {x}"
def wq(tile,t): return 256+(tile*8+t)*8
def wk(tile,t): return 256+128+(tile*8+t)*8
def wo(pi,k): return WO+(pi*4+k)*8
def wvrd(buf,n): return [dsr(buf,vWV,n*2048), dsr(buf+4,vWV,n*2048+1024)]
def preload(): return [x for n in range(7) for x in wvrd(EB[n],n)]

def prologue(A,opt):
    L=[]; E=L.append
    h=s(S_R); w=s(S_W); l=s(S_L)
    E("v_and_b32 v20, 15, v0"); E("v_lshrrev_b32 v21, 4, v0")
    E(f"v_lshlrev_b32 {v(vL4)}, 2, v0"); E("v_lshlrev_b32 v18, 3, v0"); E("v_lshlrev_b32 v0, 4, v0")
    E(f"s_lshl_b32 s68, {w}, 15"); E(f"s_add_u32 s68, s68, {LWV}"); E(f"v_add_u32 {v(vWV)}, s68, v0")
    E(f"s_lshl_b32 s69, {w}, 6")
    E("v_lshrrev_b32 v22, 2, v20"); E("v_and_b32 v23, 3, v20")
    E("v_and_b32 v24, 1, v20"); E("v_lshl_add_u32 v24, v22, 1, v24")
    E("v_lshrrev_b32 v25, 1, v23")
    E("v_and_b32 v26, 7, v20")
    E(f"v_mul_u32_u24 v27, {2*RS}, v21"); E("v_lshl_add_u32 v27, v20, 2, v27"); E(f"v_add_u32 v27, s69, v27"); E(f"v_add_u32 {v(vQW)}, {LQX}, v27")
    E(f"v_mul_u32_u24 v27, {RS}, v26"); E("v_lshl_add_u32 v27, v21, 4, v27"); E(f"v_add_u32 {v(vQR)}, {LQX}, v27")
    E(f"v_add_u32 v28, s69, v27"); E(f"v_add_u32 v29, {LOX}, v28")
    E(f"v_mul_u32_u24 v27, {RS}, v23"); E("v_lshl_add_u32 v27, v21, 4, v27"); E("v_add_u32 v27, s69, v27"); E(f"v_add_u32 v28, {LDUM}, v27")
    E("v_cmp_gt_u32 vcc, 8, v20"); E(f"v_cndmask_b32 {v(vOW)}, v28, v29, vcc")
    E(f"v_mul_u32_u24 v27, {RS}, v24"); E("v_lshl_add_u32 v28, v21, 4, v27"); E(f"v_add_u32 {v(vKR)}, {LKX}, v28")
    E(f"s_lshl_b32 s67, {w}, 10"); E(f"v_add_u32 {v(vL8)}, s67, v18")
    E("v_lshlrev_b32 v27, 7, v21"); E("v_lshl_add_u32 v27, v20, 2, v27"); E(f"v_add_u32 {v(vKS)}, s67, v27")
    E("v_lshlrev_b32 v17, 9, v21"); E("v_lshl_add_u32 v17, v20, 5, v17"); E(f"v_add_u32 v17, {LV}, v17")
    E(f"s_lshl_b32 s67, {w}, 11"); E(f"v_add_u32 {v(vVR)}, s67, v17"); E(f"v_add_u32 {v(vLW)}, s67, v0")
    E(f"s_add_u32 {s(sM0K)}, s67, {LK}"); E(f"s_add_u32 {s(sM0V)}, s67, {LV}")
    E("v_lshlrev_b32 v27, 13, v22"); E("v_lshl_add_u32 v27, v21, 11, v27"); E("v_lshl_add_u32 v27, v23, 4, v27")
    E(f"s_lshl_b32 s70, {w}, 16"); E(f"s_lshl_b32 s71, {h}, 6"); E("s_add_u32 s70, s70, s71"); E(f"v_add_u32 {v(vPST)}, s70, v27")
    E("v_mov_b32 v27, 0x4444"); E("v_mov_b32 v28, 0xeeee"); E("v_cmp_eq_u32 vcc, 1, v25"); E(f"v_cndmask_b32 {v(vIDX)}, v27, v28, vcc")
    E(f"s_mov_b32 {s(sSN)}, {SENT}"); E(f"s_mov_b32 {s(sSN+1)}, {SENT}")
    E(f"s_mov_b32 {s(sC)}, 0x3e0293ee")
    E(f"s_lshl_b32 {s(sH256)}, {h}, 8")
    E(f"s_lshl_b32 s67, {l}, 19"); E(f"s_add_u32 {s(sPW0)}, s67, {PR}"); E(f"s_add_u32 {s(sPW1)}, {s(sPW0)}, 32768")
    E(f"s_lshl_b32 s67, {h}, 13"); E(f"s_add_u32 {s(sPR)}, {s(sPW0)}, s67")
    E(f"s_lshl_b32 s67, {l}, 15"); E(f"s_add_u32 {s(sMB)}, s67, {MEMR}")
    E(f"s_lshl_b32 s67, {l}, 11"); E(f"s_add_u32 s67, s67, {h}")
    E(f"s_mul_i32 {s(sKV)}, s67, 24576"); E(f"s_add_u32 {s(sKV)}, {s(sKV)}, {QKV}")
    E(f"s_lshl_b32 {s(sOo)}, s67, 12"); E(f"s_add_u32 {s(sOo)}, {s(sOo)}, {KVM}")
    E(f"s_lshl_b32 {s(sFOn)}, s67, 5"); E(f"s_add_u32 {s(sFOn)}, {s(sFOn)}, {FM}"); E(f"s_cmp_eq_u32 {w}, 0"); E(f"s_cselect_b32 {s(sFOn)}, {s(sFOn)}, {OOB}")
    E(f"s_lshl_b32 s67, {l}, 5"); E(f"s_add_u32 s67, s67, {h}"); E(f"s_lshl_b32 {s(sFQ)}, s67, 10")
    E(f"s_mov_b32 {s(sS)}, 0"); E(f"s_mov_b32 {s(sR1)}, 0"); E(f"s_mov_b32 {s(sFO)}, {OOB}")
    E("v_lshl_add_u32 v27, v25, 1, v21"); E("v_lshlrev_b32 v27, 4, v27"); E("v_and_b32 v28, 1, v23"); E("v_lshl_add_u32 v27, v28, 3, v27"); E("v_add_u32 v27, s69, v27")
    E("v_lshl_add_u32 v28, v22, 1, v21"); E(f"v_mov_b32 v29, {OOB}"); E("v_cmp_gt_u32 vcc, 2, v28"); E(f"v_cndmask_b32 {v(vSL)}, v29, v27, vcc")
    E("v_and_b32 v27, 1, v20"); E("v_lshlrev_b32 v27, 4, v27"); E("v_mov_b32 v28, 0x3f80"); E(f"v_lshlrev_b32 {v(vIDN)}, v27, v28")
    E("v_lshrrev_b32 v27, 1, v26")
    for d in range(4): E(f"v_cmp_eq_u32 {s(IDM+2*d,2)}, {d}, v27")
    E(f"s_mov_b32 s67, {OOB}"); E(f"s_cmp_eq_u32 {w}, 1"); E(f"s_cselect_b32 {s(sPFo0)}, 786432, s67")
    E(f"v_mov_b64 v[32:33], {s(sSN,2)}"); E(f"v_mov_b64 v[34:35], {s(sSN,2)}"); E(f"s_xor_b32 s68, {s(sPR)}, 0x40000")
    for so in (sPR,68):
        for o in range(2): E(f"buffer_store_dwordx4 v[32:35], {v(vLW)}, {WSS}, {s(so)} offen offset:{1024*o}")
    E(f"s_add_u32 s67, {s(sMB)}, {s(sH256)}")
    for k in range(4):
        E(f"buffer_store_dwordx2 v[32:33], {v(vSL)}, {WSS}, s67 offen"); E("s_add_u32 s67, s67, 8192")
    A("\n".join(finalize(L)))
    arrive(A)
    if opt.get("delay",0):
        A(f"s_cmp_eq_u32 {l}, 0"); A("s_cbranch_scc1 L_rec_nodelay"); wait_go(A); wait_trigger(A); A.label("L_rec_nodelay")
    L=[]; E=L.append
    E(f"s_mov_b32 {s(sP0)}, 0x05040100"); E(f"s_mov_b32 {s(sP1)}, 0x07060302")
    E("v_lshrrev_b32 v27, 1, v21"); E("v_and_b32 v28, 1, v21")
    E("v_lshlrev_b32 v29, 18, v27"); E("v_lshl_add_u32 v29, v28, 16, v29"); E("v_lshl_add_u32 v29, v20, 2, v29")
    E(f"s_add_u32 s67, {s(sH256)}, s69"); E("v_add_u32 v30, s67, v29")
    E("v_lshlrev_b32 v29, 13, v27"); E("v_lshl_add_u32 v29, v28, 12, v29"); E("v_lshl_add_u32 v29, v20, 4, v29")
    E(f"s_lshl_b32 s67, {h}, 17"); E(f"s_lshl_b32 s68, {w}, 8"); E("s_add_u32 s67, s67, s68"); E("v_add_u32 v31, s67, v29")
    E("v_lshlrev_b32 v29, 10, v24"); E("v_lshl_add_u32 v29, v21, 6, v29"); E("v_lshl_add_u32 v29, v25, 5, v29"); E("v_add_u32 v19, s68, v29")
    E(f"s_lshl_b32 s67, {w}, 11"); E("v_add_u32 v18, s67, v0")
    SR={"Wq":80,"Wk":84,"Wv":88,"Wo":92,"mem0":8}
    for k,b in SR.items():
        E(f"s_load_dwordx2 {s(b,2)}, s[0:1], {KA[k]}"); E(f"s_mov_b32 {s(b+2)}, {8192 if k=='mem0' else 4194304}"); E(f"s_mov_b32 {s(b+3)}, 0x20000")
    E("s_waitcnt lgkmcnt(0)")
    batches=[(m,t) for m in ("Wq","Wk","Wv") for t in range(8)]+[("Wo",x) for x in range(8)]
    ST=[32,48,64]; TP=80
    def issue(i):
        m,t=batches[i]; st=ST[i%3]
        if m!="Wo":
            for d8 in range(8):
                D,dd=d8//4,d8%4
                for e2 in range(2):
                    row=128*(t//2)+64*D+16*(dd%2)+4*(t%2)+2*(dd//2)+e2
                    E(f"s_mov_b32 s67, {row*8192}"); E(f"buffer_load_dword {v(st+2*d8+e2)}, v30, {s(SR[m],4)}, s67 offen")
        else:
            k,D=t//2,t%2
            for q in range(2):
                for e2 in range(2):
                    row=32*k+16*D+2*q+e2
                    E(f"s_mov_b32 s67, {row*1024}"); E(f"buffer_load_dwordx4 {v(st+8*q+4*e2,4)}, v31, {s(SR[m],4)}, s67 offen")
    def consume(i):
        m,t=batches[i]; st=ST[i%3]
        if m!="Wo":
            for tile in range(2):
                for d8 in range(8): E(f"v_perm_b32 {v(TP+8*tile+d8)}, {v(st+2*d8+1)}, {v(st+2*d8)}, {s(sP0+tile)}")
            if m=="Wv":
                for tile in range(2):
                    for hf in range(2): E(f"ds_write_b128 {v(vWV)}, {v(TP+8*tile+4*hf,4)} offset:{(2*t+tile)*2048+hf*1024}")
            else:
                for tile in range(2):
                    base=(wq if m=="Wq" else wk)(tile,t)
                    for d8 in range(8): E(f"v_accvgpr_write_b32 {reg(base+d8)}, {v(TP+8*tile+d8)}")
        else:
            k,D=t//2,t%2
            for q in range(2):
                for hi in range(2):
                    for pi in range(4): E(f"v_perm_b32 {v(wo(pi,k)+4*D+2*q+hi)}, {v(st+8*q+4+pi)}, {v(st+8*q+pi)}, {s(sP0+hi)}")
    issue(0); issue(1)
    for i in range(len(batches)):
        if i+2<len(batches): issue(i+2)
        consume(i)
    for tt in range(2):
        for eh in range(2): E(f"buffer_load_dwordx2 {v(96+4*tt+2*eh,2)}, v19, s[8:11], 0 offen offset:{16*eh+8*tt}")
    for tt in range(2): E(f"ds_write_b128 v18, {v(96+4*tt,4)} offset:{LM+1024*tt}")
    for r in range(AQ,AQ+24,2): E(z64(r))
    E("@wait vm=all lg=all")
    A("\n".join(finalize(L)))
    wait_go(A)
    A("\n".join(finalize(preload()+book(True)+[f"v_lshlrev_b32 {v(vJ)}, 3, {v(vL16)}","@wait lg=all"])))

def xmax(mx,t,fill1,fill2):
    return [f"v_mov_b32 {v(t)}, {v(mx)}"]+fill1+[f"v_permlane32_swap_b32 {v(mx)}, {v(t)}", f"v_max_f32 {v(mx)}, {v(mx)}, {v(t)}",
            f"v_mov_b32 {v(t)}, {v(mx)}"]+fill2+[f"v_permlane16_swap_b32 {v(mx)}, {v(t)}", f"v_max_f32 {v(mx)}, {v(mx)}, {v(t)}"]
def place(n, fixed, queue):
    f={k:list(x) for k,x in fixed.items()}; cur=0
    for lo,x in queue:
        cur=max(cur,lo)
        while cur in f and cur<n-1: cur+=1
        f.setdefault(cur,[]).append(x)
    return f

def book(first=False):
    L=[]
    if not first:
        L+=[f"s_add_u32 {s(sS)}, {s(sS)}, 1", f"s_mov_b32 {s(sPRp)}, {s(sPR)}"]+[f"s_xor_b32 {s(r)}, {s(r)}, 0x40000" for r in (sPW0,sPW1,sPR)]
        L+=[f"s_add_u32 {s(sKV)}, {s(sKV)}, 786432", f"s_mov_b32 {s(sFQ)}, {s(sFQn)}", f"s_mov_b32 {s(sMRp)}, {s(sMR)}", f"s_mov_b32 {s(sMWp)}, {s(sMW)}", f"s_mov_b32 {s(sMCp)}, {s(sMC)}",
            f"s_add_u32 {s(sOo)}, {s(sOo)}, 131072", f"s_mov_b32 {s(sFO)}, {s(sFOn)}", f"s_add_u32 {s(sFOn)}, {s(sFOn)}, 1024"]
    L+=[f"s_add_u32 {s(sKVv)}, {s(sKV)}, 8192", f"s_cmp_lt_u32 {s(sS)}, 63", "s_cselect_b32 s68, 16, 0",
        f"s_cselect_b32 s67, {s(sPFo0)}, {OOB}", f"s_add_u32 {s(sFQn)}, {s(sFQ)}, s68", f"s_add_u32 {s(sPF0)}, {s(sKV)}, s67",
        f"s_add_u32 s67, {s(sS)}, 1", "s_and_b32 s67, s67, 3", "s_lshl_b32 s67, s67, 13", f"s_add_u32 {s(sMR)}, {s(sMB)}, s67",
        f"s_add_u32 {s(sMW)}, {s(sMR)}, {s(sH256)}", f"s_xor_b32 {s(sMC)}, {s(sMW)}, 0x2000", f"s_and_b32 s67, {s(sS)}, 1", "s_lshl_b32 s67, s67, 14", f"s_xor_b32 {s(sMC)}, {s(sMC)}, s67"]
    return L

def step(opt):
    L=[]; E=L.append
    def X(lst): L.extend(lst)
    def MK(i):
        if opt.get("prof")!=1: return []
        return ["s_memtime s[98:99]","s_waitcnt lgkmcnt(0)","s_sub_u32 s81, s98, s80",f"s_add_u32 s{82+i}, s{82+i}, s81","s_mov_b32 s80, s98"]
    def TL(i):
        if not opt.get("tl"): return []
        o=[f"s_memrealtime s[{82+2*i}:{83+2*i}]","s_waitcnt lgkmcnt(0)"]
        if i==2:
            o+=[f"v_mov_b32 v{24+j}, s{82+2*j}" for j in range(4)]
            o+=[f"s_lshl_b32 s67, {s(S_R)}, 2", f"s_add_u32 s67, s67, {s(S_W)}", "s_lshl_b32 s67, s67, 6", f"s_add_u32 s67, s67, {s(sS)}", "s_lshl_b32 s67, s67, 4", f"s_add_u32 s67, s67, {PROF+0x10000}",
                f"buffer_store_dwordx4 v[24:27], off, {WSS}, s67"]
        return o
    def DBG(name):
        d=opt.get("dump")
        if not d or d[0]!=name: return
        E(f"s_cmp_lg_u32 {s(sS)}, {d[2]}"); E("s_cbranch_scc1 L_dbg_skip")
        E("@wait vm=all lg=all"); E("s_nop 15")
        E(f"s_lshl_b32 s67, {s(S_R)}, 2"); E(f"s_add_u32 s67, s67, {s(S_W)}"); E("s_lshl_b32 s67, s67, 15"); E(f"s_add_u32 s67, s67, {P3}")
        for r in d[1]:
            E(f"buffer_store_dword {v(r)}, {v(vL4)}, {WSS}, s67 offen"); E("s_add_u32 s67, s67, 256"); E("s_waitcnt vmcnt(0)")
        E("s_endpgm"); E("L_dbg_skip:")
    OX=120
    E("L_rec_step:")
    X(TL(3)); E("s_barrier"); X(TL(0)); X(MK(0))
    for t in range(8): E(dsr(MF+4*t,vL16,LM+1024*t,f"m{t}"))
    dma=lambda ad,so,o,tg: f"buffer_load_dwordx4 {v(ad)}, {WSS}, {s(so)} offen offset:{o} sc1 lds ;@{tg}" if not opt.get("noKV") else "s_nop 0"
    vb=[EB[n%7] for n in range(14)]+[104,112]
    vs=[smf(AV+4*(n%2),MF+4*(n//2),vb[n]) for n in range(16)]
    R_=lambda n: wvrd(vb[n],n)
    qs=[smf(AQ+4*(n%2),MF+4*(n//2),wq(n%2,n//2)) for n in range(16)]
    ks=[smf(AK+4*(n%2),MF+4*(n//2),wk(n%2,n//2)) for n in range(16)]
    bb=[]
    for n in range(16):
        bb.append(qs[n])
        if n%2==1 and n<14: bb.append(vs[n//2])
    nq=len(bb); bb+=vs[7:13]+ks; pos={x:i for i,x in enumerate(bb)}
    pf=f"buffer_load_dword {v(vJ)}, {v(vJ)}, {WSS}, {s(sPF0)} offen sc1 ;@P" if not opt.get("nopf") else "s_nop 0"
    fixed={2:["@wait lg=m3"], 8:["@wait lg=m5"], 14:["@wait lg=m7"]}
    E(f"s_cmp_lg_u32 {s(sR1)}, 15"); E("s_cbranch_scc1 L_rec_spin"); E("L_rec_spun:")
    X([f"s_mov_b32 m0, {s(sM0K)}", "s_nop 0", dma(vLW,sKV,0,"K")])
    fixed.update({0:[dma(vLW,sKV,1024,"K")], 1:[f"s_mov_b32 m0, {s(sM0V)}"], 3:[dma(vLW,sKVv,0,"V")], 5:[dma(vLW,sKVv,1024,"V")], 7:[pf],
                  10:[f"buffer_store_dword {v(vIDX)}, off, {WSS}, {s(sFO)} sc1" if not opt.get("noFO") else "s_nop 0"],
                  22:[f"buffer_load_dword {v(vJ)}, {v(vL4)}, {WSS}, {s(sFQn)} offen sc1 ;@F"]})
    E("@wait lg=m1")
    queue=[(pos[vs[n-7]],x) for n in range(7,14) for x in R_(n)]
    q0=nq+3
    fixed.update({q0:[add(AQ,AQ,AQ+2)], q0+1:[add(AQ+1,AQ+1,AQ+3), add(AQ+4,AQ+4,AQ+6)], q0+2:[add(AQ+5,AQ+5,AQ+7), cvt(AQ+2,AQ,AQ+4)],
       q0+3:[cvt(AQ+3,AQ+1,AQ+5), f"ds_write_b32 {v(vQW)}, {v(AQ+2)} ;@q"], q0+4:[f"ds_write_b32 {v(vQW)}, {v(AQ+3)} offset:{RS} ;@q"]})
    KF=lambda a_,k: RG+8*k+4*a_
    rd=[]
    for k in range(4): rd+=[dsr(QF+4*k,vQR,64*k), dsr(KF(0,k),vL16,LK+1024*k), dsr(KF(1,k),vL16,LK+4096+1024*k)]
    b2=q0+7
    fixed[b2]=MK(1)+["@wait vm=K lg=q","s_barrier"]+MK(2)
    f={k:list(x) for k,x in fixed.items()}; cur=0
    for lo,x in queue:
        cur=max(cur,lo)
        while len(f.get(cur,[]))>=1 and cur<nq-3: cur+=1
        while len(f.get(cur,[]))>=2: cur+=1
        f.setdefault(cur,[]).append(x)
    f=place(len(bb),f,[(b2+1,x) for x in rd])
    X(weave(bb,f))
    SX=AQ; SM=60; KM=RG
    xs=[mf32(SX+4*(n%2),KF(n%2,n//2),QF+4*(n//2),0 if n<2 else SX+4*(n%2)) for n in range(8)]
    X([xs[0],xs[1]])
    X([add(AK,AK,AK+2),add(AK+1,AK+1,AK+3),add(AK+4,AK+4,AK+6),add(AK+5,AK+5,AK+7), cvt(AK+2,AK,AK+4), cvt(AK+3,AK+1,AK+5),
       f"ds_write_b32 {v(vQW)}, {v(AK+2)} offset:2304 ;@k", f"ds_write_b32 {v(vQW)}, {v(AK+3)} offset:{2304+RS} ;@k"])
    kst=[f"buffer_store_dword {v(AK+2+r)}, {v(vKS)}, {WSS}, {s(sOo)} offen offset:{64*r} sc1 ;@M" if not opt.get("noO") else "s_nop 0" for r in range(2)]
    X([xs[2],kst[0],xs[3],kst[1]]+xs[4:6]); X(MK(3)); E("@wait lg=k"); E("s_barrier"); X(MK(4))
    for k in range(4): E(dsr(KM+4*k,vKR,64*k))
    X(R_(14)[:1]+[xs[6]]+R_(14)[1:]+[xs[7]]+R_(15)[:1]+[vs[13]]+R_(15)[1:])
    mt=[mf32(SM,KM+4*k,QF+4*k,0 if k==0 else SM) for k in range(4)]
    MX=56; TT=57; ON=88; QX=32
    X([mt[0], f"v_max3_f32 {v(MX)}, {v(SX)}, {v(SX+1)}, {v(SX+2)}", mt[1], f"v_max3_f32 {v(MX)}, {v(MX)}, {v(SX+3)}, {v(SX+4)}",
       mt[2], f"v_max3_f32 {v(MX)}, {v(MX)}, {v(SX+5)}, {v(SX+6)}", mt[3], f"v_max_f32 {v(MX)}, {v(MX)}, {v(SX+7)}"])
    X([vs[14], "@wait vm=V", dsr(72,vVR,0), vs[15], dsr(76,vVR,16)])
    X(MK(5))
    on=[mov(ON+i,"0x3f803f80") for i in range(4)]
    E(f"v_max3_f32 {v(MX)}, {v(MX)}, {v(SM)}, {v(SM+1)}")
    X(xmax(MX,TT,on[0:2],on[2:4]))
    E(f"v_mul_f32 {v(TT)}, {s(sC)}, {v(MX)}")
    vals=[SX+i for i in range(8)]+[SM,SM+1]
    fma=[f"v_fma_f32 {v(r)}, {v(r)}, {s(sC)}, -{v(TT)}" for r in vals]; ex=[f"v_exp_f32 {v(r)}, {v(r)}" for r in vals]
    PX=56; PB0=62; PB1=66; VM=64; O0=48; O1=52; OS=16; AO=96
    X([fma[0],fma[1],ex[0],fma[2],ex[1],fma[3],ex[2],fma[4],ex[3],fma[5],ex[4],fma[6],ex[5],fma[7],ex[6],fma[8],ex[7],fma[9],
        cvt(PX,SX,SX+1),ex[8],cvt(PX+1,SX+2,SX+3),ex[9],cvt(PX+2,SX+4,SX+5),cvt(PX+3,SX+6,SX+7)])
    X(MK(6))
    X([add(AV,AV,AV+2),add(AV+1,AV+1,AV+3), mf32(OS,ON,PX,0), add(AV+4,AV+4,AV+6),add(AV+5,AV+5,AV+7), mf32(O0,72,PX,0),
       cvt(PB0,SM,SM+1),mov(PB0+1,0), mf32(O1,76,PX,0), cvt(VM,AV,AV+1),cvt(VM+1,AV+4,AV+5)])
    X([mf16(OS,ON,PB0,OS), cvt(PB1+1,SM,SM+1),mov(PB1,0), mf16(O0,VM,PB0,O0), z64(AO), z64(AO+2), mf16(O1,VM,PB1,O1)])
    X([f"buffer_store_dwordx2 {v(VM,2)}, {v(vL8)}, {WSS}, {s(sOo)} offen offset:512 sc1 ;@M" if not opt.get("noO") else "s_nop 0"]+[z64(AO+4), f"v_rcp_f32 {v(OS)}, {v(OS)}"]+[z64(r) for r in range(AO+6,AO+16,2)])
    X([f"v_pk_mul_f32 {v(r,2)}, {v(r,2)}, {v(OS,2)} op_sel_hi:[1,0]" for r in range(48,56,2)])
    X([cvt(56+r,O0+r,O1+r) for r in range(4)])
    E(f"ds_write_b128 {v(vOW)}, {v(56,4)} ;@o"); DBG("o")
    IDA=32; RA=36; PL=16; HP=16; SQ=40
    X([f"v_cndmask_b32 {v(IDA+d)}, 0, {v(vIDN)}, {s(IDM+2*d,2)}" for d in range(4)])
    X(MK(7)); E("@wait lg=all"); E("s_barrier"); X(MK(8))
    OF=72
    X([dsr(OF+4*k,vKR,2304+64*k) for k in range(4)])
    zz=[z64(r) for r in range(AQ,AQ+24,2)]
    X(zz[:8])
    bb=[smf(AO+4*pi,OF+4*k,wo(pi,k)) for u in range(2) for k in range(4) for pi in (2*u,2*u+1)]
    def post(u):
        b=AO+8*u; d=112+4*u
        return [cvt(d,b,b+2),cvt(d+1,b+4,b+6),cvt(d+2,b+1,b+3),cvt(d+3,b+5,b+7), f"buffer_store_dwordx4 {v(d,4)}, {v(vPST)}, {WSS}, {s(sPW0+u)} offen ;@S"]
    p0=post(0); f={11:p0[0:1],12:p0[1:2],13:p0[2:3],14:p0[3:4],15:p0[4:5]}
    f=place(16,f,[(7,x) for x in zz[8:]])
    X(weave(bb,f))
    X(post(1)); X(tl(opt,0,sS,44)); X(TL(1)); DBG("f"); X(MK(9))
    def sentchk(b,n,t):
        r=list(range(b,b+n)); o=[f"v_max3_i32 {v(t)}, {v(r[0])}, {v(r[1])}, {v(r[2])}"]; r=r[3:]
        while len(r)>1: o.append(f"v_max3_i32 {v(t)}, {v(t)}, {v(r[0])}, {v(r[1])}"); r=r[2:]
        if r: o.append(f"v_max_i32 {v(t)}, {v(t)}, {v(r[0])}")
        return o+[f"v_cmp_eq_u32 vcc, {s(sSN)}, {v(t)}"]
    pl1=[f"buffer_load_dwordx4 {v(PL+4*i,4)}, {v(vLW)}, {WSS}, {s(sPRp)} offen offset:{1024*i} sc1" for i in range(2)]
    pl2=[f"buffer_load_dwordx4 {v(HP+4*i,4)}, {v(vLW)}, {WSS}, {s(sMRp)} offen offset:{1024*i} sc1" for i in range(2)]
    pre=preload(); np1=opt.get("np1",6)
    E(f"s_cmp_eq_u32 {s(sS)}, 63"); E("s_cbranch_scc1 L_rec_done")
    X(book()+[f"v_mov_b64 {v(SQ,2)}, {s(sSN,2)}", f"v_mov_b64 {v(SQ+2,2)}, {s(sSN,2)}"]+pre[:np1]+["s_nop 7"]*opt.get("d1",8)+pl1)
    X(MK(10)); E("s_waitcnt vmcnt(0)"); E("L_rec_g:")
    X([mf32(RA,IDA,PL,0), mf32(RA,IDA,PL+4,RA)])
    X(sentchk(PL,8,44))
    for rot in (4,8): X([f"v_add_f32_dpp {v(RA+i)}, {v(RA+i)}, {v(RA+i)} row_ror:{rot} row_mask:0xf bank_mask:0xf" for i in range(4)])
    X([cvt(RA,RA,RA+1),cvt(RA+1,RA+2,RA+3)]); E("s_cbranch_vccnz L_rec_g_retry")
    E(f"buffer_store_dwordx2 {v(RA,2)}, {v(vSL)}, {WSS}, {s(sMWp)} offen")
    X(TL(2)); DBG("g"); X(MK(11))
    clr=[f"buffer_store_dwordx4 {v(SQ,4)}, {v(vLW)}, {WSS}, {s(sPRp)} offen offset:{1024*i}" for i in range(2)]+[f"buffer_store_dwordx2 {v(SQ,2)}, {v(vSL)}, {WSS}, {s(sMCp)} offen"]
    late=opt.get("clrlate",1)
    X([f"v_cmp_ne_u32 vcc, 0, {v(vJ)}"]+pre[np1:]+([] if late else clr)+[f"v_lshlrev_b32 {v(vJ)}, 3, {v(vL16)}", f"s_and_b32 {s(sR1)}, vcc_lo, 15"]+["s_nop 7"]*opt.get("d2",4)+pl2+(clr if late else []))
    X(MK(12)); E("@wait lg=all"); E("s_branch L_rec_top")
    E("L_rec_end:")
    L[:0]=["L_rec_top:", f"s_waitcnt vmcnt({3 if late else 0})", "L_rec_h2:"]+[f"ds_write_b128 {v(vLW)}, {v(HP+4*i,4)} offset:{LM+1024*i}" for i in range(2)]+sentchk(HP,8,44)+["@wait lg=all","s_cbranch_vccnz L_rec_h2_retry"]+MK(13)
    fin=finalize(L)
    return (align8(fin) if opt.get('al',1) else fin), pl1, pl2

def rec(A,opt):
    prologue(A,opt)
    stamp(A,opt,0)
    if opt.get("prof"):
        for i in range(16): A(f"s_mov_b32 s{82+i}, 0")
        A("s_memtime s[98:99]"); A("s_waitcnt lgkmcnt(0)"); A("s_mov_b32 s80, s98")
    cnt=lambda r: A(f"s_add_u32 s{r}, s{r}, 1" if opt.get("prof") else "s_nop 0")
    body,pl1,pl2=step(opt)
    A("s_branch L_rec_step"); A(".p2align 3"); A("\n".join(body))
    A.label("L_rec_g_retry"); tmo(A); cnt(96); A("s_nop 7"); A("\n".join(pl1)); A("s_waitcnt vmcnt(0)"); A("s_branch L_rec_g")
    A.label("L_rec_h2_retry"); tmo(A); cnt(97); A("\n".join(pl2)); A("s_waitcnt vmcnt(0)"); A("s_branch L_rec_h2")
    A.label("L_rec_spin"); tmo(A)
    A(f"buffer_load_dword {v(vJ)}, {v(vL4)}, {WSS}, {s(sFQ)} offen sc1"); A("s_waitcnt vmcnt(0)")
    A(f"v_cmp_ne_u32 vcc, 0, {v(vJ)}"); A(f"v_lshlrev_b32 {v(vJ)}, 3, {v(vL16)}"); A("s_nop 3"); A(f"s_and_b32 {s(sR1)}, vcc_lo, 15"); A(f"s_cmp_lg_u32 {s(sR1)}, 15")
    A("s_cbranch_scc1 L_rec_spin"); A("s_branch L_rec_spun")
    A.label("L_rec_done")
    A("s_waitcnt vmcnt(0)"); A("s_barrier"); A(f"buffer_store_dword {v(vIDX)}, off, {WSS}, {s(sFOn)} sc1")
    stamp(A,opt,1)
    if opt.get("prof"):
        A(f"s_lshl_b32 s67, {s(S_GRP)}, 5"); A(f"s_add_u32 s67, s67, {s(S_R)}"); A("s_lshl_b32 s67, s67, 2"); A(f"s_add_u32 s67, s67, {s(S_W)}"); A("s_lshl_b32 s67, s67, 6"); A(f"s_add_u32 s67, s67, {PROF}")
        for i in range(16): A(f"v_mov_b32 v{16+i}, s{82+i}")
        A("s_mov_b64 exec, 1")
        for i in range(4): A(f"buffer_store_dwordx4 v[{16+4*i}:{19+4*i}], off, {WSS}, s67 offset:{16*i}")
        A("s_waitcnt vmcnt(0)")
    A("s_branch L_end")
    return check(body+body,"rec")
```

```python
from gen_common import *
from gen_rec import cvt
WSS=s(S_WS,4)
vL16,vL8,vFa,vF,vOne=1,2,3,5,7
XB=(8,32); TB=(16,40); RB=(24,48); PB=(64,96); LB=128
sS=15; sROW=17; sP=18; sR=19; sO=20; sN=21; sF=22; sFI=23; sEPS=25; sInv=26
SX=28; SO=32
def zip2(f):
    a,b=f(0),f(1); return [x for p in zip(a,b) for x in p]
def wsum(r,t):
    o=[f"v_add_f32_dpp {v(r)}, {v(r)}, {v(r)} row_ror:{k} row_mask:0xf bank_mask:0xf" for k in (1,2,4,8)]
    for sw in ("16","32"): o+=[f"v_mov_b32 {v(t)}, {v(r)}", f"v_permlane{sw}_swap_b32 {v(r)}, {v(t)}", f"v_add_f32 {v(r)}, {v(r)}, {v(t)}"]
    return o
def unpack(d,src,n=4):
    o=[]
    for i in range(n): o+=[f"v_lshlrev_b32 {v(d+2*i)}, 16, {v(src+i)}", f"v_and_b32 {v(d+2*i+1)}, 0xffff0000, {v(src+i)}"]
    return o
def rnd(r): return [cvt(r,r,r), f"v_lshlrev_b32 {v(r)}, 16, {v(r)}"]
def ln(j):
    X=XB[j]; T=TB[j]; m=T; q=T+1; t=T+2; u=T+3; out=T+4
    pk=lambda op,d,a,b,x="": f"v_pk_{op}_f32 {v(d,2)}, {v(a,2)}, {v(b,2)}{x}"
    o=[pk("add",t,X,X+2), pk("add",out,X+4,X+6), pk("add",t,t,out), f"v_add_f32 {v(m)}, {v(t)}, {v(u)}"]+wsum(m,t)+[f"v_mul_f32 {v(m)}, {s(sInv)}, {v(m)}"]
    D=PB[j]
    o+=[pk("add",D+i,X+i,m," op_sel_hi:[1,0] neg_lo:[0,1] neg_hi:[0,1]") for i in range(0,8,2)]
    o+=[pk("mul",t,D,D)]+[f"v_pk_fma_f32 {v(t,2)}, {v(D+i,2)}, {v(D+i,2)}, {v(t,2)}" for i in (2,4,6)]+[f"v_add_f32 {v(q)}, {v(t)}, {v(u)}"]
    o+=rnd(m)+wsum(q,t)+[f"v_mul_f32 {v(q)}, {s(sInv)}, {v(q)}"]+rnd(q)+[f"v_add_f32 {v(q)}, {s(sEPS)}, {v(q)}"]+rnd(q)+[f"v_sqrt_f32 {v(q)}, {v(q)}"]
    o+=[pk("add",X+i,X+i,m," op_sel_hi:[1,0] neg_lo:[0,1] neg_hi:[0,1]") for i in range(0,8,2)]
    o+=rnd(q)+[f"v_rcp_f32 {v(t)}, {v(q)}"]+[cvt(out+i,X+2*i,X+2*i+1) for i in range(4)]+unpack(X,out)
    o+=[pk("mul",X+i,X+i,t," op_sel_hi:[1,0]") for i in range(0,8,2)]+[cvt(out+i,X+2*i,X+2*i+1) for i in range(4)]
    return o
def st2(r,j,srd,so,sc,tag=""): return [f"buffer_store_dwordx2 {v(r+2*u,2)}, {v(vL8)}, {srd}, {s(so)} offen offset:{512*u+1024*j}{sc}{tag}" for u in range(2)]
def flag(so): return ["s_mov_b64 exec, 3", f"buffer_store_dword {v(vOne)}, {v(4)}, {WSS}, {s(so)} offen sc1", "s_mov_b64 exec, -1"]
def red(A,opt):
    arrive(A)
    L=[]; E=L.append; l=s(S_L)
    for b,k in ((SX,"x"),(SO,"out")): E(f"s_load_dwordx2 {s(b,2)}, s[0:1], {KA[k]}"); E(f"s_mov_b32 {s(b+2)}, 2097152"); E(f"s_mov_b32 {s(b+3)}, 0x20000")
    E(f"v_lshlrev_b32 {v(vL16)}, 4, v0"); E(f"v_lshlrev_b32 {v(vL8)}, 3, v0"); E(f"v_lshlrev_b32 {v(vFa)}, 2, v0"); E("v_lshlrev_b32 v4, 5, v0"); E(f"v_mov_b32 {v(vOne)}, 1")
    E(f"s_and_b32 s67, {s(S_R)}, 3"); E("s_lshl_b32 s67, s67, 2"); E(f"s_add_u32 s67, s67, {s(S_W)}"); E(f"s_lshl_b32 {s(sROW)}, s67, 1")
    E(f"s_mov_b32 {s(sEPS)}, 0x3727c5ac"); E(f"s_mov_b32 {s(sInv)}, 0x3b000000"); E(f"s_mov_b32 {s(sS)}, 0")
    E(f"s_lshr_b32 s68, {s(S_R)}, 2"); E("s_lshl_b32 s67, s68, 1"); E(f"s_add_u32 s67, s67, {l}"); E("s_lshl_b32 s67, s67, 5"); E(f"s_add_u32 s67, s67, {s(sROW)}")
    E(f"s_lshl_b32 {s(sR)}, s67, 10"); E(f"s_add_u32 {s(sN)}, {s(sR)}, {XN}"); E("s_lshl_b32 s67, s67, 5"); E(f"s_add_u32 {s(sF)}, s67, {FN}")
    E("s_waitcnt lgkmcnt(0)")
    for i in range(16):
        L+=[f"buffer_load_dwordx2 {v(LB+8*i+2*u,2)}, {v(vL8)}, {s(SX,4)}, {s(sR)} offen offset:{512*u}" for u in range(4)]; E(f"s_add_u32 {s(sR)}, {s(sR)}, 131072")
        if i==7: E("s_waitcnt vmcnt(16)")
    E("s_waitcnt vmcnt(0)")
    A("\n".join(finalize(L))); wait_go(A); stamp(A,opt,0)
    L=[]; E=L.append
    for i in range(16):
        L+=zip2(lambda j: unpack(XB[j],LB+8*i+4*j)+ln(j))
        if i>=1: E(f"@wait vm=r{i-1}"); L+=flag(sF); E(f"s_add_u32 {s(sF)}, {s(sF)}, 4096")
        L+=st2(TB[0]+4,0,WSS,sN," sc1",f" ;@r{i}")+st2(TB[1]+4,1,WSS,sN," sc1",f" ;@r{i}"); E(f"s_add_u32 {s(sN)}, {s(sN)}, 131072")
    E("@wait vm=all"); L+=flag(sF)
    A("\n".join(finalize(L)))
    errs=[]
    A(f"s_lshr_b32 s67, {s(S_R)}, 2"); A(f"s_lshl_b32 s68, {l}, 1"); A("s_add_u32 s67, s67, s68")
    for k in (1,2,3): A(f"s_cmp_eq_u32 s67, {k}"); A(f"s_cbranch_scc1 L_red{k}_ini")
    for k in range(4):
        ly,st=k//2,(3,5)[k%2]; NP=4 if st==3 else 2
        stage=k+1; final=(stage==4)
        lab=lambda x:f"L_red{k}_{x}"
        A.label(lab("ini"))
        if st==5: A(f"v_and_b32 {v(vFa)}, 127, {v(vFa)}")
        A(f"s_mov_b32 {s(sFI)}, {(FP3+ly*16384) if st==3 else (FP5+ly*8192)}")
        A(f"s_lshl_b32 s67, {s(sROW)}, 11"); A(f"s_add_u32 {s(sP)}, s67, {(P3 if st==3 else P5)+ly*(2<<20)}")
        if stage==1: rs,ro,rc=s(SX,4),0,""
        else: rs,ro,rc=WSS,XR+(stage-2)*0x200000," sc1"
        A(f"s_lshl_b32 s67, {s(sROW)}, 10"); A(f"s_add_u32 {s(sR)}, s67, {ro}"); A(f"s_add_u32 {s(sO)}, s67, {0 if final else XR+(stage-1)*0x200000}"); A(f"s_add_u32 {s(sN)}, s67, {XN+stage*0x200000}")
        A(f"s_lshl_b32 s67, {s(sROW)}, 5"); A(f"s_add_u32 {s(sF)}, s67, {FN+stage*65536}")
        L=[lab("top")+":"]; E=L.append
        res=[f"buffer_load_dwordx2 {v(RB[j]+2*u,2)}, {v(vL8)}, {rs}, {s(sR)} offen offset:{512*u+1024*j}{rc}" for j in range(2) for u in range(2)]
        if stage==1: L+=res
        L+=[lab("poll")+":", f"s_sub_u32 {s(S_TMO)}, {s(S_TMO)}, 1", "s_cbranch_scc1 L_abort",
            f"buffer_load_dword {v(vF)}, {v(vFa)}, {WSS}, {s(sFI)} offen sc1", "s_waitcnt vmcnt(0)",
            f"v_cmp_ne_u32 vcc, 0, {v(vF)}", f"s_and_b32 s68, {s(sS)}, 3", f"s_mul_i32 s68, s68, {NP*65536}", f"s_add_u32 s68, s68, {s(sP)}", "s_cmp_eq_u64 vcc, exec", f"s_cbranch_scc0 {lab('poll')}"]
        for p_ in range(NP):
            L+=[f"buffer_load_dwordx4 {v(PB[j]+8*p_+4*u,4)}, {v(vL16)}, {WSS}, s68 offen offset:{1024*u+2048*j} sc1" for j in range(2) for u in range(2)]
            if p_<NP-1: E("s_add_u32 s68, s68, 65536")
        if stage!=1: L+=res
        for p_ in range(1,NP): L+=zip2(lambda j:[f"v_pk_add_f32 {v(PB[j]+i,2)}, {v(PB[j]+i,2)}, {v(PB[j]+8*p_+i,2)}" for i in range(0,8,2)])
        L+=zip2(lambda j:[cvt(TB[j]+4+i,PB[j]+2*i,PB[j]+2*i+1) for i in range(4)]+unpack(PB[j],TB[j]+4)+unpack(XB[j],RB[j])+
                [f"v_pk_add_f32 {v(XB[j]+i,2)}, {v(XB[j]+i,2)}, {v(PB[j]+i,2)}" for i in range(0,8,2)]+[cvt(RB[j]+i,XB[j]+2*i,XB[j]+2*i+1) for i in range(4)])
        for j in range(2): L+=st2(RB[j],j,s(SO,4) if final else WSS,sO," sc1" if stage==2 else "")
        if not final:
            L+=zip2(lambda j: unpack(XB[j],RB[j])+ln(j))
            for j in range(2): L+=st2(TB[j]+4,j,WSS,sN," sc1")
        L+=[f"s_add_u32 {s(sFI)}, {s(sFI)}, {256 if st==3 else 128}"]+[f"s_add_u32 {s(x)}, {s(x)}, 32768" for x in (sR,sO,sN)]
        L+=([] if final else ["s_waitcnt vmcnt(0)"])+flag(sF)+[f"s_add_u32 {s(sF)}, {s(sF)}, 1024"]
        L+=tl(opt,0,sS,100)
        L+=[f"s_add_u32 {s(sS)}, {s(sS)}, 1", f"s_cmp_lt_u32 {s(sS)}, 64", f"s_cbranch_scc1 {lab('top')}"]
        body=align8(finalize(L)); A(".p2align 3"); A("\n".join(body)); errs+=check(body+body,"red")
        stamp(A,opt,1); A("s_branch L_end")
    return errs
```

```python
import sys
from gen_common import *
import gen_rec, gen_dense, gen_s2, gen_red
def build(opt):
    A=Asm(); errs=[]
    startup(A,opt)
    roles=opt.get("roles",{"rec1","rec2","s1","s2","s3","s4","s5","red"})
    X=s(S_GRP); K=s(S_RANK); r=s(S_R); l=s(S_L)
    go=lambda role,lab: A(f"s_cbranch_scc1 {lab if role in roles else 'L_idle'}")
    A(f"s_mov_b32 {r}, {K}"); A(f"s_lshr_b32 {l}, {X}, 2")
    A(f"s_cmp_eq_u32 {X}, 0"); go("rec1","L_rec")
    A(f"s_lshr_b32 s67, 0x62, {X}"); A("s_and_b32 s67, s67, 1"); A("s_cbranch_scc1 L_x156")
    clear_flags(A,opt)
    A(f"s_cmp_eq_u32 {X}, 4"); go("rec2","L_rec")
    A(f"s_cmp_eq_u32 {X}, 2"); A("s_cbranch_scc1 L_cl"); A(f"s_cmp_eq_u32 {X}, 7"); A("s_cbranch_scc1 L_cl")
    A("s_branch L_x3")
    A.label("L_x156")
    A(f"s_sub_u32 s67, {X}, 4"); A(f"s_cmp_eq_u32 {X}, 1"); A("s_cselect_b32 s67, 0, s67"); A("s_lshl_b32 s67, s67, 5"); A(f"s_add_u32 s67, s67, {K}")
    A(f"s_mul_i32 {r}, s67, 171"); A(f"s_lshr_b32 {r}, {r}, 9"); A(f"s_mul_i32 s68, {r}, 3"); A(f"s_sub_u32 {l}, s67, s68")
    A(f"s_cmp_eq_u32 {l}, 2"); go("s2","L_s2"); A("s_cmp_eq_u32 0, 0"); go("s1","L_s1")
    A.label("L_x3"); A(f"s_lshr_b32 {l}, {K}, 4"); A(f"s_and_b32 {r}, {K}, 15"); A(f"s_cmp_ge_u32 {r}, 14"); A("s_cbranch_scc1 L_idle")
    if opt.get("only")is not None: A(f"s_cmp_lg_u32 {l}, {opt['only']}"); A("s_cbranch_scc1 L_idle")
    A("s_cmp_eq_u32 0, 0"); go("s4","L_s4")
    A.label("L_cl")
    if opt.get("only")is not None: A(f"s_cmp_lg_u32 {l}, {opt['only']}"); A("s_cbranch_scc1 L_idle")
    A(f"s_cmp_lt_u32 {K}, 16"); go("s3","L_s3"); A(f"s_and_b32 {r}, {K}, 7"); A(f"s_cmp_lt_u32 {K}, 24"); go("s5","L_s5"); A("s_cmp_eq_u32 0, 0"); go("red","L_red")
    A.label("L_idle"); arrive(A); wait_go(A); A("s_branch L_end")
    regroup(A)
    A.label("L_abort")
    A("s_mov_b64 exec, 1"); A("v_mov_b32 v100, 64"); A("v_mov_b32 v101, 1"); A(f"global_atomic_add v100, v101, {s(S_DBG,2)} sc1")
    A.label("L_end"); A("s_endpgm")
    if "rec1" in roles or "rec2" in roles: A.label("L_rec"); errs+=gen_rec.rec(A,opt)
    for R in ("s1","s3","s4","s5"):
        if R in roles: A.label("L_"+R); errs+=gen_dense.dense(A,opt,R)
    if "s2" in roles: A.label("L_s2"); errs+=gen_s2.s2(A,opt)
    if "red" in roles: A.label("L_red"); errs+=gen_red.red(A,opt)
    head=open("interleave_layers__memory_aug_recurrent_mem_tr__glu_gated_glu__prompt.s.ref").read().split("; Override launch")[0]
    txt=head+"; @launch grid=(256,1,1) block=(256,1,1) lds=163840\n"
    txt+=f'.amdgcn_target "amdgcn-amd-amdhsa--gfx950"\n.text\n.globl {NAME}\n.p2align 8\n.type {NAME},@function\n{NAME}:\n'
    txt+=A.text()
    txt+=f""".section .rodata,"a"
.p2align 6
.amdhsa_kernel {NAME}
  .amdhsa_next_free_vgpr 512
  .amdhsa_next_free_sgpr 102
  .amdhsa_accum_offset 256
  .amdhsa_group_segment_fixed_size 0
  .amdhsa_kernarg_size 112
  .amdhsa_user_sgpr_count 2
  .amdhsa_user_sgpr_kernarg_segment_ptr 1
  .amdhsa_system_sgpr_workgroup_id_x 1
  .amdhsa_float_denorm_mode_32 3
.end_amdhsa_kernel
"""
    return txt,errs
if __name__=="__main__":
    txt,errs=build(eval(sys.argv[1]) if len(sys.argv)>1 else {})
    for e in errs: print(e)
    open("k.s","w").write(txt)
```
